```python
import torch

def _softmax(x, axis=-1):
    return torch.softmax(x, dim=axis)

def _gelu(x):
    return torch.nn.functional.gelu(x, approximate='tanh')

def _silu(x):
    return torch.nn.functional.silu(x)

def _sigmoid(x):
    return torch.sigmoid(x)

def _layernorm(x, axis=-1, eps=1e-05):
    m = x.mean(dim=axis, keepdim=True)
    v = x.var(dim=axis, keepdim=True, unbiased=False)
    return (x - m) / torch.sqrt(v + eps)

def _scatter_add(tgt, idx, src, axis=0):
    return tgt.clone().index_add_(axis, idx, src)

def _segment_sum(src, seg, n):
    out = torch.zeros((n,) + src.shape[1:], dtype=src.dtype)
    return out.index_add_(0, seg, src)

def _pad(x, pw):
    flat = tuple((v for pair in reversed(pw) for v in pair))
    return torch.nn.functional.pad(x, flat)
kernel_name = 'standalone__tree_speculative_verify_tree_attention_over_candidate_token_tree__decode'

def setup_inputs():

    _w = lambda a: (lambda t: t.to(torch.bfloat16) if t.is_floating_point() else t)(torch.as_tensor(a))
    B, Hq, Hkv, T, C, D = (2, 32, 16, 1, 4096, 128)
    tree_mask = torch.zeros((B, T, T), dtype=float)
    for b in range(B):
        parent = torch.zeros(T, dtype=torch.int64)
        for i in range(1, T):
            parent[i] = int(torch.randint(0, i, (1,)).item())
        for i in range(T):
            j = i
            tree_mask[b, i, j] = 1.0
            while j > 0:
                j = parent[j]
                tree_mask[b, i, j] = 1.0
    return {'q': _w((lambda *s: torch.randn(*s, dtype=torch.bfloat16) * 0.8)(B, Hq, T, D)), 'k_cache': _w((lambda *s: torch.randn(*s, dtype=torch.bfloat16) * 0.8)(B, Hkv, C, D)), 'v_cache': _w((lambda *s: torch.randn(*s, dtype=torch.bfloat16) * 0.05)(B, Hkv, C, D)), 'k_tree': _w((lambda *s: torch.randn(*s, dtype=torch.bfloat16) * 0.8)(B, Hkv, T, D)), 'v_tree': _w((lambda *s: torch.randn(*s, dtype=torch.bfloat16) * 0.05)(B, Hkv, T, D)), 'tree_mask': _w(tree_mask)}

def reference(q, k_cache, v_cache, k_tree, v_tree, tree_mask):
    B, Hq, T, D = q.shape
    Hkv, C = (k_cache.shape[1], k_cache.shape[2])
    rep = Hq // Hkv
    kc = (lambda x, n, axis: torch.repeat_interleave(x, n, dim=axis))(k_cache, rep, axis=1)
    vc = (lambda x, n, axis: torch.repeat_interleave(x, n, dim=axis))(v_cache, rep, axis=1)
    kt = (lambda x, n, axis: torch.repeat_interleave(x, n, dim=axis))(k_tree, rep, axis=1)
    vt = (lambda x, n, axis: torch.repeat_interleave(x, n, dim=axis))(v_tree, rep, axis=1)
    k = torch.concatenate([kc, kt], axis=2)
    v = torch.concatenate([vc, vt], axis=2)
    scale = D ** (-0.5)
    scores = torch.einsum('bhqd,bhkd->bhqk', q, k) * scale
    ctx_mask = torch.ones((B, 1, T, C), dtype=scores.dtype)
    tm = tree_mask[:, None, :, :].clone()
    full_mask = torch.concatenate([ctx_mask, tm], axis=-1)
    scores = scores + (1.0 - full_mask) * -1000000000.0
    p = _softmax(scores, axis=-1)
    return torch.einsum('bhqk,bhkd->bhqd', p, v)
```

```python
import math, struct, sys

KNAME = "standalone__tree_speculative_verify_tree_attention_over_candidate_token_tree__decode_kernel"
HDR = open("standalone__tree_speculative_verify_tree_attention_over_candidate_token_tree__decode.s.ref").read().split("; Override launch")[0]


def f32(x):
    return "0x%08x" % struct.unpack("<I", struct.pack("<f", x))[0]


def log2(x):
    r = int(math.log2(x))
    assert 1 << r == x
    return r


DPP = "row_mask:0xf bank_mask:0xf"


def gen(NW=8, NSPLIT=8, KPAT="B", NT="nt", STAMP=False, MAP="bh_fast", CSTRIDE=8):
    TPW = 4096 // (NSPLIT * NW * 16)
    NL = TPW * 4
    NWG = 32 * NSPLIT
    o = []
    e = o.append
    vL, vT0, vT1, vT2, vT3 = 1, 2, 3, 4, 5
    vKo, vVo, vQo, vM, vSum, vSt = 6, 7, 8, 9, 10, 11
    vMask = 12
    vAcc = 16
    vVt = 20
    nq = 4 if KPAT == "B" else 16
    vQ = 24
    vKt = vQ + nq
    vS = vKt + nq
    vK = vS + NL
    vK = (vK + 3) // 4 * 4
    useAgprV = vK + 8 * NL > 256
    if useAgprV:
        nv = vK + 4 * NL
        acc_off = (nv + 3) // 4 * 4
        tot = acc_off + 4 * NL
        Vr = lambda i: "a[%d:%d]" % (4 * i, 4 * i + 3)
    else:
        vV = vK + 4 * NL
        nv = vV + 4 * NL
        nv = max(nv, vK + 4 * max(NW, NSPLIT))
        acc_off = (nv + 3) // 4 * 4
        tot = nv
        Vr = lambda i: "v[%d:%d]" % (vV + 4 * i, vV + 4 * i + 3)
    R4 = lambda b: "v[%d:%d]" % (b, b + 3)
    R2 = lambda b: "v[%d:%d]" % (b, b + 1)
    Kr = lambda i: vK + 4 * i
    sQ, sK, sV, sKt, sVt, sMk, sOut, sDbg, sWs = 4, 6, 8, 10, 12, 14, 16, 18, 20
    sBH, sSplit, sWave, sBase, sC, sMaskV, sSpec = 22, 23, 24, 25, 26, 27, 28
    S2 = lambda b: "s[%d:%d]" % (b, b + 1)
    LDS_ML = NW * 1024
    lds_bytes = NW * 1024 + 2 * NW * 8
    WS_ML = 32 * NSPLIT * 1024
    WS_STAMP = 1 << 20

    def stamp(k):
        if STAMP:
            e("s_memrealtime s[%d:%d]" % (40 + 2 * k, 41 + 2 * k))

    e(HDR.rstrip())
    e("; @launch grid=(%d,1,1) block=(%d,1,1) lds=%d" % (NWG, NW * 64, lds_bytes))
    e('.amdgcn_target "amdgcn-amd-amdhsa--gfx950"')
    e(".text")
    e(".globl %s" % KNAME)
    e(".p2align 8")
    e(".type %s,@function" % KNAME)
    e("%s:" % KNAME)
    if STAMP:
        for k in range(42, 60, 2):
            e("s_mov_b64 s[%d:%d], 0" % (k, k + 1))
    stamp(0)
    e("s_cmp_ge_u32 s2, %d" % NWG)
    e("s_cbranch_scc1 L_end")
    e("s_load_dwordx16 s[4:19], s[0:1], 0")
    if MAP == "bh_fast":
        e("s_and_b32 s%d, s2, 31" % sBH)
        e("s_lshr_b32 s%d, s2, 5" % sSplit)
    else:
        e("s_and_b32 s%d, s2, %d" % (sSplit, NSPLIT - 1))
        e("s_lshr_b32 s%d, s2, %d" % (sBH, log2(NSPLIT)))
    e("s_lshl_b32 s%d, s%d, 20" % (sBase, sBH))
    e("s_lshl_b32 s3, s%d, %d" % (sSplit, 20 - log2(NSPLIT)))
    e("s_add_u32 s%d, s%d, s3" % (sBase, sBase))
    e("s_add_u32 s%d, s%d, 4096" % (sBase, sBase))
    e("v_lshrrev_b32 v%d, 6, v0" % vT0)
    e("v_and_b32 v%d, 63, v0" % vL)
    e("v_readfirstlane_b32 s%d, v%d" % (sWave, vT0))
    e("v_lshlrev_b32 v%d, %d, v%d" % (vT0, log2(TPW * 4096), vT0))
    e("v_add_u32 v%d, s%d, v%d" % (vT0, sBase, vT0))
    e("v_lshl_add_u32 v%d, v%d, 4, v%d" % (vVo, vL, vT0))
    e("v_bfe_u32 v%d, v0, 4, 2" % vT1)
    e("v_and_b32 v%d, 3, v0" % vT2)
    e("v_bfe_u32 v%d, v0, 2, 2" % vT3)
    e("s_lshl_b32 s3, s%d, 9" % sBH)
    if KPAT == "B":
        e("v_lshlrev_b32 v%d, 6, v%d" % (vT1, vT1))
        e("v_lshl_add_u32 v%d, v%d, 4, v%d" % (vT1, vT2, vT1))
        e("v_lshl_add_u32 v%d, v%d, 8, v%d" % (vKo, vT3, vT0))
        e("v_add_u32 v%d, v%d, v%d" % (vKo, vKo, vT1))
    else:
        e("v_lshlrev_b32 v%d, 4, v%d" % (vT1, vT1))
        e("v_lshl_add_u32 v%d, v%d, 10, v%d" % (vKo, vT2, vT0))
        e("v_lshl_add_u32 v%d, v%d, 8, v%d" % (vKo, vT3, vKo))
        e("v_add_u32 v%d, v%d, v%d" % (vKo, vKo, vT1))
    e("v_bfe_u32 v%d, v0, 3, 1" % vT3)
    e("v_lshl_add_u32 v%d, v%d, 8, v%d" % (vQo, vT3, vT1))
    e("v_add_u32 v%d, s3, v%d" % (vQo, vQo))
    e("s_or_b32 s%d, s%d, s%d" % (sSpec, sSplit, sWave))
    e("s_lshl_b32 s3, s%d, 8" % sBH)
    e("s_cmp_lg_u32 s%d, 0" % sSpec)
    e("s_waitcnt lgkmcnt(0)")
    stamp(1)
    e("s_cbranch_scc1 L_notree0")
    e("v_add_u32 v%d, s3, v%d" % (vT1, vT1))
    e("v_and_b32 v%d, 15, v0" % vT2)
    e("v_lshlrev_b32 v%d, 4, v%d" % (vT2, vT2))
    e("v_add_u32 v%d, s3, v%d" % (vT2, vT2))
    for j in range(nq // 4):
        e("global_load_dwordx4 %s, v%d, %s offset:%d" % (R4(vKt + 4 * j), vT1, S2(sKt), 64 * j))
    e("global_load_dwordx4 %s, v%d, %s" % (R4(vVt), vT2, S2(sVt)))
    e("L_notree0:")
    for j in range(nq // 4):
        e("global_load_dwordx4 %s, v%d, %s offset:%d" % (R4(vQ + 4 * j), vQo, S2(sQ), 64 * j))
    for i in range(NL):
        t, r = divmod(i, 4)
        if t and t % 2 == 0 and r == 0:
            e("v_add_u32 v%d, 0x2000, v%d" % (vKo, vKo))
        off = (t % 2) * 4096 - 4096 + (r * 1024 if KPAT == "B" else r * 64)
        e("global_load_dwordx4 %s, v%d, %s offset:%d %s" % (R4(Kr(i)), vKo, S2(sK), off, NT))
    for i in range(NL):
        t, r = divmod(i, 4)
        if t and t % 2 == 0 and r == 0:
            e("v_add_u32 v%d, 0x2000, v%d" % (vVo, vVo))
        off = (t % 2) * 4096 - 4096 + r * 1024
        e("global_load_dwordx4 %s, v%d, %s offset:%d %s" % (Vr(i), vVo, S2(sV), off, NT))
    stamp(2)
    e("s_load_dwordx2 %s, s[0:1], 64" % S2(sWs))
    e("s_load_dword s%d, %s, 0" % (sMaskV, S2(sMk)))
    e("s_mov_b32 s%d, %s" % (sC, f32(128 ** -0.5 * math.log2(math.e))))
    e("v_mov_b32 v%d, 0xff800000" % vSt)
    for r in range(4):
        e("v_mov_b32 v%d, 0" % (vAcc + r))
    e("v_and_b32 v%d, 1, v0" % vT0)
    e("v_lshlrev_b32 v%d, 4, v%d" % (vT0, vT0))
    e("v_mov_b32 v%d, 0xffff" % vT1)
    e("v_lshlrev_b32 v%d, v%d, v%d" % (vT0, vT0, vT1))
    e("v_bfe_u32 v%d, v0, 1, 2" % vT1)
    for r in range(4):
        e("v_cmp_eq_u32 vcc, %d, v%d" % (r, vT1))
        e("s_nop 1")
        e("v_cndmask_b32 v%d, 0, v%d, vcc" % (vMask + r, vT0))

    def vm(n):
        e("s_waitcnt vmcnt(%d)" % min(n, 63))

    def quadsum(dsts, srcs):
        for c in range(4):
            for d, s in zip(dsts, srcs):
                if c == 0:
                    e("v_mov_b32_dpp v%d, v%d quad_perm:[0,0,0,0] %s" % (d, s, DPP))
                else:
                    e("v_add_f32_dpp v%d, v%d, v%d quad_perm:[%d,%d,%d,%d] %s" % (d, s + c, d, c, c, c, c, DPP))
            if len(dsts) < 3:
                e("s_nop 1")

    e("s_cmp_lg_u32 s%d, 0" % sSpec)
    e("s_cbranch_scc1 L_notree1")
    vm(2 * NL)
    if KPAT == "B":
        e("v_mfma_f32_16x16x32_bf16 %s, %s, %s, 0" % (R4(vKt), R4(vKt), R4(vQ)))
        e("s_nop 7")
        quadsum([vSt], [vKt])
    else:
        for j in range(4):
            e("v_mfma_f32_16x16x32_bf16 %s, %s, %s, %s" % (R4(vS), R4(vKt + 4 * j), R4(vQ + 4 * j), "0" if j == 0 else R4(vS)))
        e("s_nop 7")
        e("v_mov_b32 v%d, v%d" % (vSt, vS))
    e("s_waitcnt lgkmcnt(0)")
    e("s_lshr_b32 s3, s%d, 4" % sBH)
    e("s_lshl_b32 s3, s3, 4")
    e("s_lshr_b32 s%d, s%d, s3" % (sMaskV, sMaskV))
    e("s_lshl_b32 s%d, s%d, 16" % (sMaskV, sMaskV))
    e("v_mov_b32 v%d, %s" % (vT1, f32(-1e9 * 128 ** 0.5)))
    e("v_sub_f32 v%d, 1.0, s%d" % (vT0, sMaskV))
    e("v_fmac_f32 v%d, v%d, v%d" % (vSt, vT0, vT1))
    e("L_notree1:")
    for t in range(TPW):
        for r in range(4):
            i = 4 * t + r
            vm(2 * NL - 1 - i)
            if KPAT == "B":
                e("v_mfma_f32_16x16x32_bf16 %s, %s, %s, 0" % (R4(Kr(i)), R4(Kr(i)), R4(vQ)))
            else:
                e("v_mfma_f32_16x16x32_bf16 %s, %s, %s, %s" % (R4(vS + 4 * t), R4(Kr(i)), R4(vQ + 4 * r), "0" if r == 0 else R4(vS + 4 * t)))
        if KPAT == "B":
            e("s_nop 4")
            quadsum([vS + 4 * t + r for r in range(4)], [Kr(4 * t + r) for r in range(4)])
    stamp(3)
    if KPAT != "B":
        e("s_nop 7")
    e("v_max3_f32 v%d, v%d, v%d, v%d" % (vM, vSt, vS, vS + 1))
    for i in range(2, NL, 2):
        e("v_max3_f32 v%d, v%d, v%d, v%d" % (vM, vM, vS + i, vS + i + 1))

    def xg(reg, op):
        for sw in ("v_permlane32_swap_b32", "v_permlane16_swap_b32"):
            e("v_mov_b32 v%d, v%d" % (vT0, reg))
            e("s_nop 1")
            e("%s v%d, v%d" % (sw, reg, vT0))
            e("s_nop 1")
            e("%s v%d, v%d, v%d" % (op, reg, reg, vT0))

    xg(vM, "v_max_f32")
    e("v_mul_f32 v%d, s%d, v%d" % (vM, sC, vM))
    for i in range(NL):
        e("v_fma_f32 v%d, v%d, s%d, -v%d" % (vS + i, vS + i, sC, vM))
    for i in range(NL):
        e("v_exp_f32 v%d, v%d" % (vS + i, vS + i))
    e("v_add_f32 v%d, v%d, v%d" % (vSum, vS, vS + 1))
    for i in range(2, NL):
        e("v_add_f32 v%d, v%d, v%d" % (vSum, vSum, vS + i))
    for i in range(NL):
        e("v_cvt_pk_bf16_f32 v%d, v%d, v%d" % (vS + i, vS + i, vS + i))
    for i in range(NL):
        for r in range(4):
            e("v_and_b32 v%d, v%d, v%d" % (Kr(i) + r, vMask + r, vS + i))
    e("s_cmp_lg_u32 s%d, 0" % sSpec)
    e("s_cbranch_scc1 L_notree2")
    e("v_mov_b32 v%d, 0" % vT1)
    e("s_mov_b64 exec, 0xffff")
    e("v_fma_f32 v%d, v%d, s%d, -v%d" % (vT1, vSt, sC, vM))
    e("v_exp_f32 v%d, v%d" % (vT1, vT1))
    e("s_mov_b64 exec, -1")
    e("v_add_f32 v%d, v%d, v%d" % (vSum, vSum, vT1))
    e("v_cvt_pk_bf16_f32 v%d, v%d, v%d" % (vT1, vT1, vT1))
    for r in range(4):
        e("v_and_b32 v%d, v%d, v%d" % (vKt + r, vMask + r, vT1))
    e("s_nop 1")
    e("v_mfma_f32_16x16x32_bf16 %s, %s, %s, %s" % (R4(vAcc), R4(vKt), R4(vVt), R4(vAcc)))
    e("L_notree2:")
    xg(vSum, "v_add_f32")
    e("v_mov_b32 v%d, v%d" % (vT0, vM))
    e("v_mov_b32 v%d, v%d" % (vT1, vSum))
    e("v_bfe_u32 v%d, v0, 3, 1" % vT2)
    e("v_lshlrev_b32 v%d, %d, v%d" % (vT2, log2(NW * 8), vT2))
    e("s_lshl_b32 s3, s%d, 3" % sWave)
    e("v_add_u32 v%d, s3, v%d" % (vT2, vT2))
    e("s_mov_b64 exec, 0x101")
    e("ds_write_b64 v%d, %s offset:%d" % (vT2, R2(vT0), LDS_ML))
    e("s_mov_b64 exec, -1")
    e("v_lshlrev_b32 v%d, 4, v0" % vT3)
    stamp(4)
    for i in range(NL):
        vm(NL - 1 - i)
        e("v_mfma_f32_16x16x32_bf16 %s, %s, %s, %s" % (R4(vAcc), R4(Kr(i)), Vr(i), R4(vAcc)))
    stamp(5)
    e("s_nop 7")
    e("ds_write_b128 v%d, %s" % (vT3, R4(vAcc)))
    e("s_waitcnt lgkmcnt(0)")
    e("s_barrier")
    stamp(6)
    e("s_cmp_lg_u32 s%d, 0" % sWave)
    e("s_cbranch_scc1 L_fin")

    def reduce_steps(n):
        st = []
        if n >= 2:
            st.append("quad_perm:[1,0,3,2]")
        if n >= 4:
            st.append("quad_perm:[2,3,0,1]")
        if n >= 8:
            st.append("row_half_mirror")
        if n >= 16:
            st.append("row_mirror")
        return st

    def combine(n, waitml, waito):
        waitml()
        first = True
        for st in reduce_steps(n):
            src = vT0 if first else vM
            if not first:
                e("s_nop 1")
            e("v_max_f32_dpp v%d, v%d, v%d %s %s" % (vM, src, src, st, DPP))
            first = False
        e("v_sub_f32 v%d, v%d, v%d" % (vT0, vT0, vM))
        e("v_exp_f32 v%d, v%d" % (vT0, vT0))
        e("s_nop 0")
        e("v_mul_f32 v%d, v%d, v%d" % (vSum, vT0, vT1))
        for st in reduce_steps(n):
            e("s_nop 1")
            e("v_add_f32_dpp v%d, v%d, v%d %s %s" % (vSum, vSum, vSum, st, DPP))
        for w in range(n):
            waito(w)
            for r in range(4):
                op = "v_mul_f32_dpp" if w == 0 else "v_fmac_f32_dpp"
                e("%s v%d, v%d, v%d row_newbcast:%d %s" % (op, vAcc + r, vT0, Kr(w) + r, w, DPP))

    e("v_lshrrev_b32 v%d, 5, v0" % vQo)
    e("v_and_b32 v%d, %d, v0" % (vT2, NW - 1))
    e("v_lshlrev_b32 v%d, 3, v%d" % (vT2, vT2))
    e("v_lshl_add_u32 v%d, v%d, %d, v%d" % (vT2, vQo, log2(NW * 8), vT2))
    e("ds_read_b64 %s, v%d offset:%d" % (R2(vT0), vT2, LDS_ML))
    for w in range(NW):
        e("ds_read_b128 %s, v%d offset:%d" % (R4(Kr(w)), vT3, 1024 * w))
    combine(NW, lambda: e("s_waitcnt lgkmcnt(%d)" % min(NW, 15)), lambda w: e("s_waitcnt lgkmcnt(%d)" % min(NW - 1 - w, 15)))
    e("s_lshl_b32 s3, s%d, %d" % (sBH, 10 + log2(NSPLIT)))
    e("v_add_u32 v%d, s3, v%d" % (vKo, vT3))
    e("s_lshl_b32 s29, s%d, 10" % sSplit)
    e("v_add_u32 v%d, s29, v%d" % (vVo, vKo))
    e("global_store_dwordx4 v%d, %s, %s sc1" % (vVo, R4(vAcc), S2(sWs)))
    e("s_lshl_b32 s3, s%d, %d" % (sBH, 1 + log2(NSPLIT * 8)))
    e("s_add_u32 s3, s3, %d" % WS_ML)
    e("v_lshlrev_b32 v%d, %d, v%d" % (vSt, log2(NSPLIT * 8), vQo))
    e("v_add_u32 v%d, s3, v%d" % (vSt, vSt))
    e("s_lshl_b32 s29, s%d, 3" % sSplit)
    e("v_add_u32 v%d, s29, v%d" % (vT2, vSt))
    e("v_mov_b32 v%d, v%d" % (vT0, vM))
    e("v_mov_b32 v%d, v%d" % (vT1, vSum))
    e("s_mov_b32 exec_lo, 1")
    e("s_mov_b32 exec_hi, 1")
    e("global_store_dwordx2 v%d, %s, %s sc1" % (vT2, R2(vT0), S2(sWs)))
    e("s_mov_b64 exec, 1")
    e("s_mul_i32 s3, s%d, %d" % (sBH, CSTRIDE))
    e("v_mov_b32 v%d, s3" % vVt)
    e("v_mov_b32 v%d, 1" % (vVt + 1))
    e("s_waitcnt vmcnt(0)")
    stamp(7)
    e("global_atomic_add v%d, v%d, v%d, %s sc0" % (vVt + 2, vVt, vVt + 1, S2(sDbg)))
    e("s_waitcnt vmcnt(0)")
    stamp(8)
    e("v_readfirstlane_b32 s3, v%d" % (vVt + 2))
    e("s_mov_b64 exec, -1")
    e("s_cmp_lg_u32 s3, %d" % (NSPLIT - 1))
    e("s_cbranch_scc1 L_fin")
    e("v_and_b32 v%d, %d, v0" % (vT2, NSPLIT - 1))
    e("v_lshl_add_u32 v%d, v%d, 3, v%d" % (vT2, vT2, vSt))
    e("global_load_dwordx2 %s, v%d, %s sc1" % (R2(vT0), vT2, S2(sWs)))
    e("v_add_u32 v%d, 0x1000, v%d" % (vKo, vKo))
    for w in range(NSPLIT):
        if w == 8:
            e("v_add_u32 v%d, 0x2000, v%d" % (vKo, vKo))
        e("global_load_dwordx4 %s, v%d, %s offset:%d sc1" % (R4(Kr(w)), vKo, S2(sWs), (w % 8) * 1024 - 4096))
    e("s_lshl_b32 s3, s%d, 9" % sBH)
    e("v_lshlrev_b32 v%d, 8, v%d" % (vQo, vQo))
    e("v_add_u32 v%d, s3, v%d" % (vQo, vQo))
    e("v_and_b32 v%d, 15, v0" % vT2)
    e("v_lshl_add_u32 v%d, v%d, 4, v%d" % (vQo, vT2, vQo))
    e("v_bfe_u32 v%d, v0, 4, 1" % vT2)
    e("v_lshl_add_u32 v%d, v%d, 3, v%d" % (vQo, vT2, vQo))
    combine(NSPLIT, lambda: vm(NSPLIT), lambda w: vm(NSPLIT - 1 - w))
    e("v_rcp_f32 v%d, v%d" % (vSum, vSum))
    e("s_nop 0")
    for r in range(4):
        e("v_mul_f32 v%d, v%d, v%d" % (vAcc + r, vAcc + r, vSum))
    e("v_cvt_pk_bf16_f32 v%d, v%d, v%d" % (vT0, vAcc, vAcc + 1))
    e("v_cvt_pk_bf16_f32 v%d, v%d, v%d" % (vT1, vAcc + 2, vAcc + 3))
    e("global_store_dwordx2 v%d, %s, %s" % (vQo, R2(vT0), S2(sOut)))
    stamp(9)
    e("L_fin:")
    if STAMP:
        e("s_waitcnt vmcnt(0) lgkmcnt(0)")
        e("s_memrealtime s[60:61]")
        e("s_getreg_b32 s62, hwreg(HW_REG_XCC_ID)")
        e("s_getreg_b32 s63, hwreg(HW_REG_HW_ID)")
        e("s_waitcnt lgkmcnt(0)")
        e("s_mul_i32 s3, s2, %d" % NW)
        e("s_add_u32 s3, s3, s%d" % sWave)
        e("s_lshl_b32 s3, s3, 7")
        e("s_add_u32 s3, s3, %d" % WS_STAMP)
        e("s_mov_b64 exec, 1")
        e("v_mov_b32 v1, s3")
        for k in range(12):
            e("v_mov_b32 v2, s%d" % (40 + 2 * k))
            e("v_mov_b32 v3, s%d" % (41 + 2 * k))
            e("global_store_dwordx2 v1, v[2:3], %s offset:%d" % (S2(sWs), 8 * k))
            e("s_nop 1")
    e("L_end:")
    e("s_endpgm")
    e('.section .rodata,"a"')
    e(".p2align 6")
    e(".amdhsa_kernel %s" % KNAME)
    e("  .amdhsa_next_free_vgpr %d" % tot)
    e("  .amdhsa_next_free_sgpr %d" % (64 if STAMP else 32))
    e("  .amdhsa_accum_offset %d" % acc_off)
    e("  .amdhsa_group_segment_fixed_size 0")
    e("  .amdhsa_kernarg_size 72")
    e("  .amdhsa_user_sgpr_count 2")
    e("  .amdhsa_user_sgpr_kernarg_segment_ptr 1")
    e("  .amdhsa_system_sgpr_workgroup_id_x 1")
    e("  .amdhsa_float_denorm_mode_32 3")
    e(".end_amdhsa_kernel")
    txt = "\n".join(("    " + l if not (l.startswith((";", ".", " ")) or l.endswith(":")) else l) for l in o) + "\n"
    return txt


if __name__ == "__main__":
    kw = {}
    out = sys.argv[1]
    for a in sys.argv[2:]:
        k, v = a.split("=", 1)
        kw[k] = int(v) if v.lstrip("-").isdigit() else (v == "True" if v in ("True", "False") else v)
    open(out, "w").write(gen(**kw))
```

```python
import math, struct, sys

KNAME = "standalone__tree_speculative_verify_tree_attention_over_candidate_token_tree__decode_kernel"
HDR = open("standalone__tree_speculative_verify_tree_attention_over_candidate_token_tree__decode.s.ref").read().split("; Override launch")[0]


def f32(x):
    return "0x%08x" % struct.unpack("<I", struct.pack("<f", x))[0]


def log2(x):
    r = int(math.log2(x))
    assert 1 << r == x
    return r


DPP = "row_mask:0xf bank_mask:0xf"


def gen(NW=8, NSPLIT=8, KPAT="B", NT="nt", STAMP=False, MAP="bh_fast", CSTRIDE=8, DBGT=False, PAD=0, PADEND=False, OUTF="", GMIN=False, CH=-1):
    TPW = 4096 // (NSPLIT * NW * 16)
    NL = TPW * 4
    NWG = 32 * NSPLIT
    o = []
    e = o.append
    vL, vT0, vT1, vT2, vT3 = 1, 2, 3, 4, 5
    vKo, vVo, vQo, vM, vSum, vSt = 6, 7, 8, 9, 10, 11
    vMask = 12
    vAcc = 16
    vVt = 20
    nq = 4 if KPAT == "B" else 16
    vQ = 24
    vKt = vQ + nq
    vS = vKt + nq
    vK = vS + NL
    vK = (vK + 3) // 4 * 4
    useAgprV = vK + 8 * NL > 256
    if useAgprV:
        nv = vK + 4 * NL
        acc_off = (nv + 3) // 4 * 4
        tot = acc_off + 4 * NL
        Vr = lambda i: "a[%d:%d]" % (4 * i, 4 * i + 3)
    else:
        vV = vK + 4 * NL
        nv = vV + 4 * NL
        nv = max(nv, vK + 4 * max(NW, NSPLIT))
        acc_off = (nv + 3) // 4 * 4
        tot = nv
        Vr = lambda i: "v[%d:%d]" % (vV + 4 * i, vV + 4 * i + 3)
    R4 = lambda b: "v[%d:%d]" % (b, b + 3)
    R2 = lambda b: "v[%d:%d]" % (b, b + 1)
    Kr = lambda i: vK + 4 * i
    sQ, sK, sV, sKt, sVt, sMk, sOut, sDbg, sWs = 4, 6, 8, 10, 12, 14, 16, 18, 20
    sBH, sSplit, sWave, sBase, sC, sMaskV, sSpec = 22, 23, 24, 25, 26, 27, 28
    S2 = lambda b: "s[%d:%d]" % (b, b + 1)
    LDS_ML = NW * 1024
    lds_bytes = NW * 1024 + 2 * NW * 8
    WS_ML = 32 * NSPLIT * 1024
    WS_STAMP = 1 << 20

    def stamp(k):
        if STAMP:
            e("s_memrealtime s[%d:%d]" % (40 + 2 * k, 41 + 2 * k))

    e(HDR.rstrip())
    e("; @launch grid=(%d,1,1) block=(%d,1,1) lds=%d" % (NWG, NW * 64, lds_bytes))
    e('.amdgcn_target "amdgcn-amd-amdhsa--gfx950"')
    e(".text")
    e(".globl %s" % KNAME)
    e(".p2align 8")
    e(".type %s,@function" % KNAME)
    e("%s:" % KNAME)
    if STAMP:
        for k in range(42, 60, 2):
            e("s_mov_b64 s[%d:%d], 0" % (k, k + 1))
    stamp(0)
    e("s_cmp_ge_u32 s2, %d" % NWG)
    e("s_cbranch_scc1 L_end")
    e("s_load_dwordx16 s[4:19], s[0:1], 0")
    if MAP == "bh_fast":
        e("s_and_b32 s%d, s2, 31" % sBH)
        e("s_lshr_b32 s%d, s2, 5" % sSplit)
    else:
        e("s_and_b32 s%d, s2, %d" % (sSplit, NSPLIT - 1))
        e("s_lshr_b32 s%d, s2, %d" % (sBH, log2(NSPLIT)))
    e("s_lshl_b32 s%d, s%d, 20" % (sBase, sBH))
    e("s_lshl_b32 s3, s%d, %d" % (sSplit, 20 - log2(NSPLIT)))
    e("s_add_u32 s%d, s%d, s3" % (sBase, sBase))
    e("s_add_u32 s%d, s%d, 4096" % (sBase, sBase))
    e("v_lshrrev_b32 v%d, 6, v0" % vT0)
    e("v_and_b32 v%d, 63, v0" % vL)
    e("v_readfirstlane_b32 s%d, v%d" % (sWave, vT0))
    e("v_lshlrev_b32 v%d, %d, v%d" % (vT0, log2(TPW * 4096), vT0))
    e("v_add_u32 v%d, s%d, v%d" % (vT0, sBase, vT0))
    e("v_lshl_add_u32 v%d, v%d, 4, v%d" % (vVo, vL, vT0))
    e("v_bfe_u32 v%d, v0, 4, 2" % vT1)
    e("v_and_b32 v%d, 3, v0" % vT2)
    e("v_bfe_u32 v%d, v0, 2, 2" % vT3)
    e("s_lshl_b32 s3, s%d, 9" % sBH)
    if KPAT == "B":
        e("v_lshlrev_b32 v%d, 6, v%d" % (vT1, vT1))
        e("v_lshl_add_u32 v%d, v%d, 4, v%d" % (vT1, vT2, vT1))
        e("v_lshl_add_u32 v%d, v%d, 8, v%d" % (vKo, vT3, vT0))
        e("v_add_u32 v%d, v%d, v%d" % (vKo, vKo, vT1))
    else:
        e("v_lshlrev_b32 v%d, 4, v%d" % (vT1, vT1))
        e("v_lshl_add_u32 v%d, v%d, 10, v%d" % (vKo, vT2, vT0))
        e("v_lshl_add_u32 v%d, v%d, 8, v%d" % (vKo, vT3, vKo))
        e("v_add_u32 v%d, v%d, v%d" % (vKo, vKo, vT1))
    e("v_bfe_u32 v%d, v0, 3, 1" % vT3)
    e("v_lshl_add_u32 v%d, v%d, 8, v%d" % (vQo, vT3, vT1))
    e("v_add_u32 v%d, s3, v%d" % (vQo, vQo))
    e("s_or_b32 s%d, s%d, s%d" % (sSpec, sSplit, sWave))
    e("s_lshl_b32 s3, s%d, 8" % sBH)
    e("s_cmp_lg_u32 s%d, 0" % sSpec)
    e("s_waitcnt lgkmcnt(0)")
    stamp(1)
    e("s_cbranch_scc1 L_notree0")
    e("v_add_u32 v%d, s3, v%d" % (vT1, vT1))
    e("v_and_b32 v%d, 15, v0" % vT2)
    e("v_lshlrev_b32 v%d, 4, v%d" % (vT2, vT2))
    e("v_add_u32 v%d, s3, v%d" % (vT2, vT2))
    for j in range(nq // 4):
        e("global_load_dwordx4 %s, v%d, %s offset:%d" % (R4(vKt + 4 * j), vT1, S2(sKt), 64 * j))
    e("global_load_dwordx4 %s, v%d, %s" % (R4(vVt), vT2, S2(sVt)))
    e("L_notree0:")
    for j in range(nq // 4):
        e("global_load_dwordx4 %s, v%d, %s offset:%d" % (R4(vQ + 4 * j), vQo, S2(sQ), 64 * j))
    for i in range(NL):
        t, r = divmod(i, 4)
        if t and t % 2 == 0 and r == 0:
            e("v_add_u32 v%d, 0x2000, v%d" % (vKo, vKo))
        off = (t % 2) * 4096 - 4096 + (r * 1024 if KPAT == "B" else r * 64)
        e("global_load_dwordx4 %s, v%d, %s offset:%d %s" % (R4(Kr(i)), vKo, S2(sK), off, NT))
    for i in range(NL):
        t, r = divmod(i, 4)
        if t and t % 2 == 0 and r == 0:
            e("v_add_u32 v%d, 0x2000, v%d" % (vVo, vVo))
        off = (t % 2) * 4096 - 4096 + r * 1024
        e("global_load_dwordx4 %s, v%d, %s offset:%d %s" % (Vr(i), vVo, S2(sV), off, NT))
    stamp(2)
    e("s_load_dwordx2 %s, s[0:1], 64" % S2(sWs))
    e("s_load_dword s%d, %s, 0" % (sMaskV, S2(sMk)))
    e("s_mov_b32 s%d, %s" % (sC, f32(128 ** -0.5 * math.log2(math.e))))
    e("v_mov_b32 v%d, 0xff800000" % vSt)
    for r in range(4):
        e("v_mov_b32 v%d, 0" % (vAcc + r))
    e("v_and_b32 v%d, 1, v0" % vT0)
    e("v_lshlrev_b32 v%d, 4, v%d" % (vT0, vT0))
    e("v_mov_b32 v%d, 0xffff" % vT1)
    e("v_lshlrev_b32 v%d, v%d, v%d" % (vT0, vT0, vT1))
    e("v_bfe_u32 v%d, v0, 1, 2" % vT1)
    for r in range(4):
        e("v_cmp_eq_u32 vcc, %d, v%d" % (r, vT1))
        e("s_nop 1")
        e("v_cndmask_b32 v%d, 0, v%d, vcc" % (vMask + r, vT0))

    def vm(n):
        e("s_waitcnt vmcnt(%d)" % min(n, 63))

    def quadsum(dsts, srcs):
        for c in range(4):
            for d, s in zip(dsts, srcs):
                if c == 0:
                    e("v_mov_b32_dpp v%d, v%d quad_perm:[0,0,0,0] %s" % (d, s, DPP))
                else:
                    e("v_add_f32_dpp v%d, v%d, v%d quad_perm:[%d,%d,%d,%d] %s" % (d, s + c, d, c, c, c, c, DPP))
            if len(dsts) < 3:
                e("s_nop 1")

    e("s_cmp_lg_u32 s%d, 0" % sSpec)
    e("s_cbranch_scc1 L_notree1")
    vm(2 * NL)
    if KPAT == "B":
        e("v_mfma_f32_16x16x32_bf16 %s, %s, %s, 0" % (R4(vKt), R4(vKt), R4(vQ)))
        e("s_nop 7")
        quadsum([vSt], [vKt])
    else:
        for j in range(4):
            e("v_mfma_f32_16x16x32_bf16 %s, %s, %s, %s" % (R4(vS), R4(vKt + 4 * j), R4(vQ + 4 * j), "0" if j == 0 else R4(vS)))
        e("s_nop 7")
        e("v_mov_b32 v%d, v%d" % (vSt, vS))
    e("s_waitcnt lgkmcnt(0)")
    e("s_lshr_b32 s3, s%d, 4" % sBH)
    e("s_lshl_b32 s3, s3, 4")
    e("s_lshr_b32 s%d, s%d, s3" % (sMaskV, sMaskV))
    e("s_lshl_b32 s%d, s%d, 16" % (sMaskV, sMaskV))
    e("v_mov_b32 v%d, %s" % (vT1, f32(-1e9 * 128 ** 0.5)))
    e("v_sub_f32 v%d, 1.0, s%d" % (vT0, sMaskV))
    e("v_fmac_f32 v%d, v%d, v%d" % (vSt, vT0, vT1))
    if GMIN:
        e("s_not_b32 s3, s40")
        e("v_mov_b32 v%d, 0" % vT0)
        e("v_mov_b32 v%d, s3" % vT1)
        e("s_mov_b64 exec, 1")
        e("global_atomic_umax v%d, v%d, %s offset:4" % (vT0, vT1, S2(sDbg)))
        e("s_mov_b64 exec, -1")
        e("s_waitcnt vmcnt(0)")
    e("L_notree1:")
    for t in range(TPW):
        for r in range(4):
            i = 4 * t + r
            vm(2 * NL - 1 - i)
            if KPAT == "B":
                e("v_mfma_f32_16x16x32_bf16 %s, %s, %s, 0" % (R4(Kr(i)), R4(Kr(i)), R4(vQ)))
            else:
                e("v_mfma_f32_16x16x32_bf16 %s, %s, %s, %s" % (R4(vS + 4 * t), R4(Kr(i)), R4(vQ + 4 * r), "0" if r == 0 else R4(vS + 4 * t)))
        if KPAT == "B":
            e("s_nop 4")
            quadsum([vS + 4 * t + r for r in range(4)], [Kr(4 * t + r) for r in range(4)])
    stamp(3)
    if KPAT != "B":
        e("s_nop 7")
    e("v_max3_f32 v%d, v%d, v%d, v%d" % (vM, vSt, vS, vS + 1))
    for i in range(2, NL, 2):
        e("v_max3_f32 v%d, v%d, v%d, v%d" % (vM, vM, vS + i, vS + i + 1))

    def xg(reg, op):
        for sw in ("v_permlane32_swap_b32", "v_permlane16_swap_b32"):
            e("v_mov_b32 v%d, v%d" % (vT0, reg))
            e("s_nop 1")
            e("%s v%d, v%d" % (sw, reg, vT0))
            e("s_nop 1")
            e("%s v%d, v%d, v%d" % (op, reg, reg, vT0))

    xg(vM, "v_max_f32")
    e("v_mul_f32 v%d, s%d, v%d" % (vM, sC, vM))
    for i in range(NL):
        e("v_fma_f32 v%d, v%d, s%d, -v%d" % (vS + i, vS + i, sC, vM))
    for i in range(NL):
        e("v_exp_f32 v%d, v%d" % (vS + i, vS + i))
    e("v_add_f32 v%d, v%d, v%d" % (vSum, vS, vS + 1))
    for i in range(2, NL):
        e("v_add_f32 v%d, v%d, v%d" % (vSum, vSum, vS + i))
    for i in range(NL):
        e("v_cvt_pk_bf16_f32 v%d, v%d, v%d" % (vS + i, vS + i, vS + i))
    for i in range(NL):
        for r in range(4):
            e("v_and_b32 v%d, v%d, v%d" % (Kr(i) + r, vMask + r, vS + i))
    e("s_cmp_lg_u32 s%d, 0" % sSpec)
    e("s_cbranch_scc1 L_notree2")
    e("v_mov_b32 v%d, 0" % vT1)
    e("s_mov_b64 exec, 0xffff")
    e("v_fma_f32 v%d, v%d, s%d, -v%d" % (vT1, vSt, sC, vM))
    e("v_exp_f32 v%d, v%d" % (vT1, vT1))
    e("s_mov_b64 exec, -1")
    e("v_add_f32 v%d, v%d, v%d" % (vSum, vSum, vT1))
    e("v_cvt_pk_bf16_f32 v%d, v%d, v%d" % (vT1, vT1, vT1))
    for r in range(4):
        e("v_and_b32 v%d, v%d, v%d" % (vKt + r, vMask + r, vT1))
    e("s_nop 1")
    e("v_mfma_f32_16x16x32_bf16 %s, %s, %s, %s" % (R4(vAcc), R4(vKt), R4(vVt), R4(vAcc)))
    e("L_notree2:")
    xg(vSum, "v_add_f32")
    e("v_mov_b32 v%d, v%d" % (vT0, vM))
    e("v_mov_b32 v%d, v%d" % (vT1, vSum))
    e("v_bfe_u32 v%d, v0, 3, 1" % vT2)
    e("v_lshlrev_b32 v%d, %d, v%d" % (vT2, log2(NW * 8), vT2))
    e("s_lshl_b32 s3, s%d, 3" % sWave)
    e("v_add_u32 v%d, s3, v%d" % (vT2, vT2))
    e("s_mov_b64 exec, 0x101")
    e("ds_write_b64 v%d, %s offset:%d" % (vT2, R2(vT0), LDS_ML))
    e("s_mov_b64 exec, -1")
    e("v_lshlrev_b32 v%d, 4, v0" % vT3)
    stamp(4)
    for i in range(NL):
        vm(NL - 1 - i)
        e("v_mfma_f32_16x16x32_bf16 %s, %s, %s, %s" % (R4(vAcc), R4(Kr(i)), Vr(i), R4(vAcc)))
    stamp(5)
    e("s_nop 7")
    e("ds_write_b128 v%d, %s" % (vT3, R4(vAcc)))
    e("s_waitcnt lgkmcnt(0)")
    e("s_barrier")
    stamp(6)
    e("s_cmp_lg_u32 s%d, 0" % sWave)
    e("s_cbranch_scc1 L_fin")

    def reduce_steps(n):
        st = []
        if n >= 2:
            st.append("quad_perm:[1,0,3,2]")
        if n >= 4:
            st.append("quad_perm:[2,3,0,1]")
        if n >= 8:
            st.append("row_half_mirror")
        if n >= 16:
            st.append("row_mirror")
        return st

    def combine(n, waitml, waito):
        waitml()
        first = True
        for st in reduce_steps(n):
            src = vT0 if first else vM
            if not first:
                e("s_nop 1")
            e("v_max_f32_dpp v%d, v%d, v%d %s %s" % (vM, src, src, st, DPP))
            first = False
        e("v_sub_f32 v%d, v%d, v%d" % (vT0, vT0, vM))
        e("v_exp_f32 v%d, v%d" % (vT0, vT0))
        e("s_nop 0")
        e("v_mul_f32 v%d, v%d, v%d" % (vSum, vT0, vT1))
        for st in reduce_steps(n):
            e("s_nop 1")
            e("v_add_f32_dpp v%d, v%d, v%d %s %s" % (vSum, vSum, vSum, st, DPP))
        for w in range(n):
            waito(w)
            for r in range(4):
                op = "v_mul_f32_dpp" if w == 0 else "v_fmac_f32_dpp"
                e("%s v%d, v%d, v%d row_newbcast:%d %s" % (op, vAcc + r, vT0, Kr(w) + r, w, DPP))

    e("v_lshrrev_b32 v%d, 5, v0" % vQo)
    e("v_and_b32 v%d, %d, v0" % (vT2, NW - 1))
    e("v_lshlrev_b32 v%d, 3, v%d" % (vT2, vT2))
    e("v_lshl_add_u32 v%d, v%d, %d, v%d" % (vT2, vQo, log2(NW * 8), vT2))
    e("ds_read_b64 %s, v%d offset:%d" % (R2(vT0), vT2, LDS_ML))
    for w in range(NW):
        e("ds_read_b128 %s, v%d offset:%d" % (R4(Kr(w)), vT3, 1024 * w))
    combine(NW, lambda: e("s_waitcnt lgkmcnt(%d)" % min(NW, 15)), lambda w: e("s_waitcnt lgkmcnt(%d)" % min(NW - 1 - w, 15)))
    e("s_lshl_b32 s3, s%d, %d" % (sBH, 10 + log2(NSPLIT)))
    e("v_add_u32 v%d, s3, v%d" % (vKo, vT3))
    e("s_lshl_b32 s29, s%d, 10" % sSplit)
    e("v_add_u32 v%d, s29, v%d" % (vVo, vKo))
    e("global_store_dwordx4 v%d, %s, %s sc1" % (vVo, R4(vAcc), S2(sWs)))
    e("s_lshl_b32 s3, s%d, %d" % (sBH, 1 + log2(NSPLIT * 8)))
    e("s_add_u32 s3, s3, %d" % WS_ML)
    e("v_lshlrev_b32 v%d, %d, v%d" % (vSt, log2(NSPLIT * 8), vQo))
    e("v_add_u32 v%d, s3, v%d" % (vSt, vSt))
    e("s_lshl_b32 s29, s%d, 3" % sSplit)
    e("v_add_u32 v%d, s29, v%d" % (vT2, vSt))
    e("v_mov_b32 v%d, v%d" % (vT0, vM))
    e("v_mov_b32 v%d, v%d" % (vT1, vSum))
    e("s_mov_b32 exec_lo, 1")
    e("s_mov_b32 exec_hi, 1")
    e("global_store_dwordx2 v%d, %s, %s sc1" % (vT2, R2(vT0), S2(sWs)))
    e("s_mov_b64 exec, 1")
    e("s_mul_i32 s3, s%d, %d" % (sBH, CSTRIDE))
    e("v_mov_b32 v%d, s3" % vVt)
    e("v_mov_b32 v%d, 1" % (vVt + 1))
    e("s_waitcnt vmcnt(0)")
    stamp(7)
    e("global_atomic_add v%d, v%d, v%d, %s sc0" % (vVt + 2, vVt, vVt + 1, S2(sDbg)))
    e("s_waitcnt vmcnt(0)")
    stamp(8)
    e("v_readfirstlane_b32 s3, v%d" % (vVt + 2))
    e("s_mov_b64 exec, -1")
    e("s_cmp_lg_u32 s3, %d" % (NSPLIT - 1))
    e("s_cbranch_scc1 L_fin")
    e("v_and_b32 v%d, %d, v0" % (vT2, NSPLIT - 1))
    e("v_lshl_add_u32 v%d, v%d, 3, v%d" % (vT2, vT2, vSt))
    e("global_load_dwordx2 %s, v%d, %s sc1" % (R2(vT0), vT2, S2(sWs)))
    e("v_add_u32 v%d, 0x1000, v%d" % (vKo, vKo))
    for w in range(NSPLIT):
        if w == 8:
            e("v_add_u32 v%d, 0x2000, v%d" % (vKo, vKo))
        e("global_load_dwordx4 %s, v%d, %s offset:%d sc1" % (R4(Kr(w)), vKo, S2(sWs), (w % 8) * 1024 - 4096))
    e("s_lshl_b32 s3, s%d, 9" % sBH)
    e("v_lshlrev_b32 v%d, 8, v%d" % (vQo, vQo))
    e("v_add_u32 v%d, s3, v%d" % (vQo, vQo))
    e("v_and_b32 v%d, 15, v0" % vT2)
    e("v_lshl_add_u32 v%d, v%d, 4, v%d" % (vQo, vT2, vQo))
    e("v_bfe_u32 v%d, v0, 4, 1" % vT2)
    e("v_lshl_add_u32 v%d, v%d, 3, v%d" % (vQo, vT2, vQo))
    combine(NSPLIT, lambda: vm(NSPLIT), lambda w: vm(NSPLIT - 1 - w))
    e("v_rcp_f32 v%d, v%d" % (vSum, vSum))
    e("s_nop 0")
    for r in range(4):
        e("v_mul_f32 v%d, v%d, v%d" % (vAcc + r, vAcc + r, vSum))
    e("v_cvt_pk_bf16_f32 v%d, v%d, v%d" % (vT0, vAcc, vAcc + 1))
    e("v_cvt_pk_bf16_f32 v%d, v%d, v%d" % (vT1, vAcc + 2, vAcc + 3))
    e("global_store_dwordx2 v%d, %s, %s %s" % (vQo, R2(vT0), S2(sOut), OUTF))
    stamp(9)
    e("L_fin:")
    if STAMP:
        e("s_waitcnt vmcnt(0) lgkmcnt(0)")
        e("s_memrealtime s[60:61]")
        e("s_getreg_b32 s62, hwreg(HW_REG_XCC_ID)")
        e("s_getreg_b32 s63, hwreg(HW_REG_HW_ID)")
        e("s_waitcnt lgkmcnt(0)")
        if PAD:
            if GMIN:
                e("v_mov_b32 v1, 0")
                e("global_load_dword v2, v1, %s offset:4 sc1" % S2(sDbg))
                e("s_waitcnt vmcnt(0)")
                e("v_readfirstlane_b32 s40, v2")
                e("s_nop 4")
                e("s_not_b32 s40, s40")
            e("s_mov_b32 s39, %d" % PAD)
            if CH >= 0:
                e("s_sub_u32 s3, s%d, s40" % (40 + 2 * CH))
                e("s_cmp_eq_u32 s%d, 0" % (40 + 2 * CH))
                e("s_cselect_b32 s3, 0, s3")
                e("s_min_u32 s3, s3, 3000")
                e("s_lshl_b32 s3, s3, 2")
                e("s_add_u32 s39, s39, s3")
            e("L_pad:")
            e("s_memrealtime s[60:61]")
            e("s_waitcnt lgkmcnt(0)")
            e("s_sub_u32 s3, s60, s40")
            e("s_cmp_lt_u32 s3, s39")
            e("s_cbranch_scc1 L_pad")
            if PADEND:
                e("s_endpgm")
        if DBGT:
            e("s_mov_b64 exec, 1")
            e("v_mov_b32 v1, 0")
            e("s_not_b32 s3, s40")
            for k, src in enumerate(["s3", "s40", "s42", "s44", "s50", "s52", "s56", "s60"]):
                e("v_mov_b32 v2, %s" % src)
                e("global_atomic_umax v1, v2, %s offset:%d" % (S2(sDbg), 4 + 8 * k))
                e("s_nop 1")
            e("s_endpgm")
        e("s_mul_i32 s3, s2, %d" % NW)
        e("s_add_u32 s3, s3, s%d" % sWave)
        e("s_lshl_b32 s3, s3, 7")
        e("s_add_u32 s3, s3, %d" % WS_STAMP)
        e("s_mov_b64 exec, 1")
        e("v_mov_b32 v1, s3")
        for k in range(12):
            e("v_mov_b32 v2, s%d" % (40 + 2 * k))
            e("v_mov_b32 v3, s%d" % (41 + 2 * k))
            e("global_store_dwordx2 v1, v[2:3], %s offset:%d" % (S2(sWs), 8 * k))
            e("s_nop 1")
    e("L_end:")
    e("s_endpgm")
    e('.section .rodata,"a"')
    e(".p2align 6")
    e(".amdhsa_kernel %s" % KNAME)
    e("  .amdhsa_next_free_vgpr %d" % tot)
    e("  .amdhsa_next_free_sgpr %d" % (64 if STAMP else 32))
    e("  .amdhsa_accum_offset %d" % acc_off)
    e("  .amdhsa_group_segment_fixed_size 0")
    e("  .amdhsa_kernarg_size 72")
    e("  .amdhsa_user_sgpr_count 2")
    e("  .amdhsa_user_sgpr_kernarg_segment_ptr 1")
    e("  .amdhsa_system_sgpr_workgroup_id_x 1")
    e("  .amdhsa_float_denorm_mode_32 3")
    e(".end_amdhsa_kernel")
    txt = "\n".join(("    " + l if not (l.startswith((";", ".", " ")) or l.endswith(":")) else l) for l in o) + "\n"
    return txt


if __name__ == "__main__":
    kw = {}
    out = sys.argv[1]
    for a in sys.argv[2:]:
        k, v = a.split("=", 1)
        kw[k] = int(v) if v.lstrip("-").isdigit() else (v == "True" if v in ("True", "False") else v)
    open(out, "w").write(gen(**kw))
```

```python
import math, struct, sys

KNAME = "standalone__tree_speculative_verify_tree_attention_over_candidate_token_tree__decode_kernel"
HDR = open("standalone__tree_speculative_verify_tree_attention_over_candidate_token_tree__decode.s.ref").read().split("; Override launch")[0]
DPP = "row_mask:0xf bank_mask:0xf"


def f32(x):
    return "0x%08x" % struct.unpack("<I", struct.pack("<f", x))[0]


def runs(srcs):
    out = []
    for d, r, s in srcs:
        if out and out[-1][1] == r and out[-1][0] + out[-1][3] == d and out[-1][2] + out[-1][3] == s:
            out[-1][3] += 1
        else:
            out.append([d, r, s, 1])
    return out


def gen(PATS="jjwwjjjsss", WGMAP="bbbbbsss", XSH=5, R=16, NT="nt", FAST=True, ASTEP=8, NVGPR=0,
        STAMP=False, PAD=0, CH=-1, CH0=0, OUTF="", POLLF="sc1", SPIN=1 << 16, FLAG="smem", HPRIO=0):
    assert PATS.startswith("jj") and len(PATS) == 10 and (XSH < 0 or XSH >= 2)
    NW, NL = 4, 32
    o = []
    e = o.append
    R4 = lambda b: "v[%d:%d]" % (b, b + 3)
    R2 = lambda b: "v[%d:%d]" % (b, b + 1)
    S2 = lambda b: "s[%d:%d]" % (b, b + 1)
    vL, vT0, vT1, vT2, vT3 = 1, 2, 3, 4, 5
    vKb, vVb, vA, vB = 6, 7, 8, 9
    vM, vSum = 10, 11
    vMask, vAcc, vQ, vPd = 12, 16, 20, 24
    vS = 32
    vT = vS + NL
    vR = vT + 32
    nv = vR + 4 * R
    slot = lambda i: vR + 4 * (i % R)
    sQ, sK, sV, sKt, sVt, sMk, sOut, sDbg, sWs = 4, 6, 8, 10, 12, 14, 16, 18, 20
    sBH, sSplit, sWave, sBase, sC, sMaskV, sXcc, sCnt = 22, 23, 24, 25, 26, 27, 28, 29
    LDS_ML = NW * 1024
    lds_bytes = NW * 1024 + 64
    WS_ML = 32 * 8192
    WS_STAMP = 1 << 20
    CEXP = 128 ** -0.5 * math.log2(math.e)

    def stamp(k):
        if STAMP:
            e("s_memrealtime s[%d:%d]" % (40 + 2 * k, 41 + 2 * k))

    def vm(n):
        e("s_waitcnt vmcnt(%d)" % min(n, 63))

    def setexec(lo, hi=None):
        hi = lo if hi is None else hi
        if lo == hi == 0xffffffff:
            e("s_mov_b64 exec, -1")
        else:
            e("s_mov_b32 exec_lo, 0x%x" % lo)
            e("s_mov_b32 exec_hi, 0x%x" % hi)

    e(HDR.rstrip())
    e("; @launch grid=(256,1,1) block=(320,1,1) lds=%d" % lds_bytes)
    e('.amdgcn_target "amdgcn-amd-amdhsa--gfx950"')
    e(".text")
    e(".globl %s" % KNAME)
    e(".p2align 8")
    e(".type %s,@function" % KNAME)
    e("%s:" % KNAME)
    if STAMP:
        for k in range(42, 60, 2):
            e("s_mov_b64 s[%d:%d], 0" % (k, k + 1))
    stamp(0)
    e("s_cmp_ge_u32 s2, 256")
    e("s_cbranch_scc1 L_end")
    e("s_load_dwordx8 s[4:11], s[0:1], 0")
    if STAMP:
        e("s_load_dwordx2 %s, s[0:1], 64" % S2(sWs))
    e("v_lshrrev_b32 v%d, 6, v0" % vT0)
    e("v_and_b32 v%d, 63, v0" % vL)
    e("v_readfirstlane_b32 s%d, v%d" % (sWave, vT0))

    def gather(dst, items):
        first = True
        for d, r, s, w in runs(items):
            t = dst if first else 3
            e("s_bfe_u32 s%d, s%d, 0x%x" % (t, r, s | (w << 16)))
            if d:
                e("s_lshl_b32 s%d, s%d, %d" % (t, t, d))
            if not first:
                e("s_or_b32 s%d, s%d, s3" % (dst, dst))
            first = False

    gather(sBH, [(k, 2, p) for k, p in enumerate(i for i, c in enumerate(WGMAP) if c == "b")])
    gather(sSplit, [(k, 2, p) for k, p in enumerate(i for i, c in enumerate(WGMAP) if c == "s")])
    e("s_mov_b32 s%d, %s" % (sC, f32(CEXP)))
    e("s_cmp_eq_u32 s%d, 4" % sWave)
    e("s_cbranch_scc1 L_helper")
    items, cnt, jpos = [], {"w": 0, "s": 0}, []
    for p, c in enumerate(PATS):
        if c == "j":
            jpos.append(p)
        else:
            items.append((p + 10, sWave if c == "w" else sSplit, cnt[c]))
            cnt[c] += 1
    items += [(20 + k, sBH, k) for k in range(5)]
    gather(sBase, items)
    if XSH >= 0:
        e("s_lshl_b32 s3, s%d, %d" % (sBH, XSH + 10))
        if XSH > 5:
            e("s_and_b32 s3, s3, 0xfffff")
        e("s_xor_b32 s%d, s%d, s3" % (sBase, sBase))
    D = lambda j: sum(((j >> k) & 1) << (p + 10) for k, p in enumerate(jpos))
    e("v_lshl_add_u32 v%d, v%d, 4, s%d" % (vVb, vL, sBase))
    e("v_bfe_u32 v%d, v0, 4, 2" % vT1)
    e("v_and_b32 v%d, 3, v0" % vT2)
    e("v_bfe_u32 v%d, v0, 2, 2" % vT3)
    e("v_lshlrev_b32 v%d, 6, v%d" % (vT1, vT1))
    e("v_lshl_add_u32 v%d, v%d, 4, v%d" % (vT1, vT2, vT1))
    e("v_lshl_add_u32 v%d, v%d, 8, s%d" % (vKb, vT3, sBase))
    e("v_add_u32 v%d, v%d, v%d" % (vKb, vKb, vT1))
    e("v_bfe_u32 v%d, v0, 3, 1" % vT3)
    e("s_lshl_b32 s3, s%d, 9" % sBH)
    e("v_lshl_add_u32 v%d, v%d, 8, v%d" % (vT1, vT3, vT1))
    e("v_add_u32 v%d, s3, v%d" % (vT1, vT1))
    e("s_waitcnt lgkmcnt(0)")
    stamp(1)

    def issue(i):
        kv, j = divmod(i, NL)
        base = vVb if kv else vKb
        addr = base
        if j >= 4:
            addr = vA
            if j % 4 == 0:
                e("v_xor_b32 v%d, 0x%x, v%d" % (vA, D(j), base))
        e("global_load_dwordx4 %s, v%d, %s offset:%d %s" % (R4(slot(i)), addr, S2(sV if kv else sK), (j % 4) * 1024, NT))

    issue(0)
    e("global_load_dwordx4 %s, v%d, %s" % (R4(vQ), vT1, S2(sQ)))
    for i in range(1, R):
        issue(i)
    e("v_and_b32 v%d, 1, v0" % vT0)
    e("v_lshlrev_b32 v%d, 4, v%d" % (vT0, vT0))
    e("v_mov_b32 v%d, 0xffff" % vT1)
    e("v_lshlrev_b32 v%d, v%d, v%d" % (vT0, vT0, vT1))
    e("v_bfe_u32 v%d, v0, 1, 2" % vT1)
    for r in range(4):
        e("v_cmp_eq_u32 vcc, %d, v%d" % (r, vT1))
        e("s_nop 1")
        e("v_cndmask_b32 v%d, 0, v%d, vcc" % (vMask + r, vT0))
    e("v_lshlrev_b32 v%d, 5, v%d" % (vT2, vT3))
    e("s_lshl_b32 s3, s%d, 3" % sWave)
    e("v_add_u32 v%d, s3, v%d" % (vT2, vT2))
    e("v_lshlrev_b32 v%d, 4, v0" % vT3)

    T = lambda g, r: vT + 16 * (g % 2) + 4 * r

    def dppround(g, c):
        for r in range(4):
            d, s = vS + 4 * g + r, T(g, r)
            if c == 0:
                e("v_mov_b32_dpp v%d, v%d quad_perm:[0,0,0,0] %s" % (d, s, DPP))
            else:
                e("v_add_f32_dpp v%d, v%d, v%d quad_perm:[%d,%d,%d,%d] %s" % (d, s + c, d, c, c, c, c, DPP))

    def maxg(g):
        b = vS + 4 * g
        if g == 0:
            e("v_max3_f32 v%d, v%d, v%d, v%d" % (vM, b, b + 1, b + 2))
            e("v_max_f32 v%d, v%d, v%d" % (vM, vM, b + 3))
        else:
            e("v_max3_f32 v%d, v%d, v%d, v%d" % (vM, vM, b, b + 1))
            e("v_max3_f32 v%d, v%d, v%d, v%d" % (vM, vM, b + 2, b + 3))

    for g in range(8):
        for r in range(4):
            i = 4 * g + r
            vm(R - 1)
            e("v_mfma_f32_16x16x32_bf16 %s, %s, %s, 0" % (R4(T(g, r)), R4(slot(i)), R4(vQ)))
            issue(i + R)
            if g == 0 and r == 3:
                e("s_nop 3")
            if g > 0:
                dppround(g - 1, r)
        if g > 0:
            maxg(g - 1)
    stamp(3)
    for c in range(4):
        dppround(7, c)
    maxg(7)

    def xg(reg, op):
        for sw in ("v_permlane32_swap_b32", "v_permlane16_swap_b32"):
            e("v_mov_b32 v%d, v%d" % (vT0, reg))
            e("s_nop 1")
            e("%s v%d, v%d" % (sw, reg, vT0))
            e("s_nop 0")
            e("%s v%d, v%d, v%d" % (op, reg, reg, vT0))

    xg(vM, "v_max_f32")
    e("v_mul_f32 v%d, s%d, v%d" % (vM, sC, vM))

    def expg(g):
        b = vS + 4 * g
        for r in range(4):
            e("v_fma_f32 v%d, v%d, s%d, -v%d" % (b + r, b + r, sC, vM))
        for r in range(4):
            e("v_exp_f32 v%d, v%d" % (b + r, b + r))
        if g == 0:
            e("v_add_f32 v%d, v%d, v%d" % (vSum, b, b + 1))
        else:
            e("v_add_f32 v%d, v%d, v%d" % (vSum, vSum, b))
            e("v_add_f32 v%d, v%d, v%d" % (vSum, vSum, b + 1))
        e("v_add_f32 v%d, v%d, v%d" % (vSum, vSum, b + 2))
        e("v_add_f32 v%d, v%d, v%d" % (vSum, vSum, b + 3))
        for r in range(4):
            e("v_cvt_pk_bf16_f32 v%d, v%d, v%d" % (b + r, b + r, b + r))

    Pd = lambda i: (vT + 4 * (i - 24)) if i >= 24 else (vPd + 4 * (i % 2))

    def mkpd(i):
        for r in range(4):
            e("v_and_b32 v%d, v%d, v%d" % (Pd(i) + r, vMask + r, vS + i))

    expg(0)
    mkpd(0)
    for i in range(NL):
        if i + 1 < 8:
            expg(i + 1)
        if i + 1 < 24:
            mkpd(i + 1)
        if 8 <= i < 16:
            mkpd(i + 16)
        if i == 7:
            xg(vSum, "v_add_f32")
            setexec(0x101, 0)
            e("ds_write_b64 v%d, %s offset:%d" % (vT2, R2(vM), LDS_ML))
            setexec(0xffffffff)
        if i == ASTEP:
            e("s_waitcnt lgkmcnt(0)")
            e("s_barrier")
        vm(min(R - 1, NL - 1 - i))
        e("v_mfma_f32_16x16x32_bf16 %s, %s, %s, %s" % (R4(vAcc), R4(Pd(i)), R4(slot(NL + i)), R4(vAcc) if i else "0"))
        if NL + i + R < 2 * NL:
            issue(NL + i + R)
            if NL + i + R == 2 * NL - 1:
                stamp(2)
    stamp(5)
    e("s_nop 7")
    e("ds_write_b128 v%d, %s" % (vT3, R4(vAcc)))
    e("s_waitcnt lgkmcnt(0)")
    e("s_barrier")
    e("s_branch L_fin" if STAMP else "s_endpgm")

    vH, vO16, vOa, vMLa, vOut = 6, 7, 8, 9, 12
    vF, vMx = 13, 14
    vVt = 20
    vW = 24
    vP = 40
    vAc2 = 36
    e("L_helper:")
    if HPRIO:
        e("s_setprio %d" % HPRIO)
    e("s_load_dwordx8 s[12:19], s[0:1], 32")
    e("s_load_dwordx2 %s, s[0:1], 64" % S2(sWs))
    e("s_getreg_b32 s%d, hwreg(HW_REG_XCC_ID, 0, 4)" % sXcc)
    e("s_or_b32 s%d, s%d, 0x100" % (sXcc, sXcc))
    e("v_lshrrev_b32 v%d, 5, v%d" % (vH, vL))
    e("v_lshlrev_b32 v%d, 4, v%d" % (vO16, vL))
    e("v_and_b32 v%d, 15, v0" % vT0)
    e("s_lshl_b32 s3, s%d, 13" % sBH)
    e("s_add_u32 s3, s3, 4096")
    e("v_add_u32 v%d, s3, v%d" % (vOa, vO16))
    e("s_lshl_b32 s3, s%d, 7" % sBH)
    e("s_add_u32 s3, s3, %d" % WS_ML)
    e("v_lshl_add_u32 v%d, v%d, 6, s3" % (vMLa, vH))
    e("v_and_b32 v%d, 3, v0" % vT2)
    e("v_lshlrev_b32 v%d, 3, v%d" % (vT2, vT2))
    e("v_lshl_add_u32 v%d, v%d, 5, v%d" % (vT2, vH, vT2))
    e("s_lshl_b32 s3, s%d, 3" % sBH)
    e("v_mov_b32 v%d, s3" % vT3)
    e("v_mov_b32 v%d, 0xff800000" % vM)
    e("v_mov_b32 v%d, 0" % vSum)
    e("s_mov_b32 s%d, %d" % (sCnt, SPIN))
    e("s_cmp_eq_u32 s%d, 0" % sSplit)
    e("s_waitcnt lgkmcnt(0)")
    e("s_cbranch_scc1 L_cons")

    STEPS = ["quad_perm:[1,0,3,2]", "quad_perm:[2,3,0,1]", "row_half_mirror", "row_mirror"]

    def weights(nsteps):
        for k, st in enumerate(STEPS[:nsteps]):
            src = vM if k == 0 else vMx
            e("s_nop 1")
            e("v_max_f32_dpp v%d, v%d, v%d %s %s" % (vMx, src, src, st, DPP))
        e("v_sub_f32 v%d, v%d, v%d" % (vF, vM, vMx))
        e("v_exp_f32 v%d, v%d" % (vF, vF))
        e("s_nop 0")
        e("v_mul_f32 v%d, v%d, v%d" % (vSum, vF, vSum))
        for st in STEPS[:nsteps]:
            e("s_nop 1")
            e("v_add_f32_dpp v%d, v%d, v%d %s %s" % (vSum, vSum, vSum, st, DPP))

    def pkfma(dst, w, src, cin):
        wb, sel = vW + (w & ~1), w & 1
        for hh in (0, 2):
            if cin is None:
                e("v_pk_mul_f32 %s, %s, %s op_sel:[%d,0] op_sel_hi:[%d,1]" % (R2(dst + hh), R2(wb), R2(src + hh), sel, sel))
            else:
                e("v_pk_fma_f32 %s, %s, %s, %s op_sel:[%d,0,0] op_sel_hi:[%d,1,1]" % (R2(dst + hh), R2(wb), R2(src + hh), R2(cin + hh), sel, sel))

    e("s_lshl_b32 s3, s%d, 10" % sSplit)
    e("v_add_u32 v%d, s3, v%d" % (vOa, vOa))
    e("s_lshl_b32 s3, s%d, 3" % sSplit)
    e("v_add_u32 v%d, s3, v%d" % (vMLa, vMLa))
    e("s_barrier")
    stamp(4)
    e("ds_read_b64 %s, v%d offset:%d" % (R2(vM), vT2, LDS_ML))
    if FLAG == "smem":
        e("s_lshl_b32 s30, s%d, 3" % sBH)
        e("s_load_dword s3, %s, s30" % S2(sDbg))
        e("s_waitcnt lgkmcnt(0)")
        e("s_cmp_lg_u32 s3, 0")
        e("s_cbranch_scc1 L_pflag_done")
    elif FLAG == "none":
        e("s_mov_b32 s3, s%d" % sXcc)
        e("s_branch L_pflag_done")
    e("L_pflag:")
    e("global_load_dword v%d, v%d, %s sc1" % (vT0, vT3, S2(sDbg)))
    e("s_sub_u32 s%d, s%d, 1" % (sCnt, sCnt))
    e("s_cbranch_scc1 L_pflag_done")
    e("s_waitcnt vmcnt(0)")
    e("v_readfirstlane_b32 s3, v%d" % vT0)
    e("s_cmp_eq_u32 s3, 0")
    e("s_cbranch_scc1 L_pflag")
    e("L_pflag_done:")
    e("s_waitcnt lgkmcnt(0)")
    weights(2)
    e("v_mov_b32 v%d, v%d" % (vMx + 1, vSum))
    setexec(1, 1)
    e("global_store_dwordx2 v%d, %s, %s sc1" % (vMLa, R2(vMx), S2(sWs)))
    setexec(0xffffffff)
    for w in range(4):
        e("v_mov_b32_dpp v%d, v%d row_newbcast:%d %s" % (vW + w, vF, w, DPP))
    e("s_cmp_eq_u32 s3, s%d" % sXcc)
    stamp(7)
    e("s_barrier")
    stamp(6)
    for w in range(4):
        e("ds_read_b128 %s, v%d offset:%d" % (R4(vP + 4 * w), vO16, 1024 * w))
    for w in range(4):
        e("s_waitcnt lgkmcnt(%d)" % (3 - w))
        pkfma(vAcc, w, vP + 4 * w, vAcc if w else None)
    if FAST:
        e("s_cbranch_scc1 L_pfast")
    e("global_store_dwordx4 v%d, %s, %s offset:-4096 sc1" % (vOa, R4(vAcc), S2(sWs)))
    stamp(9)
    e("s_branch L_fin" if STAMP else "s_endpgm")
    if FAST:
        e("L_pfast:")
        e("global_store_dwordx4 v%d, %s, %s offset:-4096" % (vOa, R4(vAcc), S2(sWs)))
        stamp(9)
        e("s_branch L_fin" if STAMP else "s_endpgm")

    e("L_cons:")
    e("s_load_dword s%d, %s, 0" % (sMaskV, S2(sMk)))
    for r in range(4):
        e("v_mov_b32 v%d, -1" % (vAcc + r))
    for s in range(1, 8):
        e("global_store_dwordx4 v%d, %s, %s offset:%d sc1" % (vOa, R4(vAcc), S2(sWs), s * 1024 - 4096))
    e("v_lshl_add_u32 v%d, v%d, 3, v%d" % (vT1, vT0, vMLa))
    setexec(0xff, 0xff)
    e("global_store_dwordx2 v%d, %s, %s sc1" % (vT1, R2(vAcc), S2(sWs)))
    setexec(0xffffffff)
    e("v_add_u32 v%d, -24, v%d" % (vMLa, vT1))
    e("v_bfe_u32 v%d, v0, 4, 1" % vT1)
    e("v_lshlrev_b32 v%d, 3, v%d" % (vT1, vT1))
    e("v_lshl_add_u32 v%d, v%d, 4, v%d" % (vT1, vT0, vT1))
    e("s_lshl_b32 s3, s%d, 8" % sBH)
    e("v_add_u32 v%d, s3, v%d" % (vT1, vT1))
    e("v_lshl_add_u32 v%d, v%d, 8, v%d" % (vOut, vH, vT1))
    e("v_add_u32 v%d, s3, v%d" % (vOut, vOut))
    e("global_load_dwordx2 %s, v%d, %s" % (R2(vP), vOut, S2(sQ)))
    e("global_load_dwordx2 %s, v%d, %s" % (R2(vP + 2), vT1, S2(sKt)))
    e("global_load_dwordx2 %s, v%d, %s" % (R2(vP + 4), vT1, S2(sVt)))
    e("v_mov_b32 v%d, s%d" % (vT0, sXcc))
    e("s_waitcnt vmcnt(0) lgkmcnt(0)")
    setexec(1, 0)
    e("global_store_dword v%d, v%d, %s sc1" % (vT3, vT0, S2(sDbg)))
    setexec(0xffffffff)
    for k in range(2):
        e("v_lshlrev_b32 v%d, 16, v%d" % (vP + 8 + 2 * k, vP + k))
        e("v_and_b32 v%d, 0xffff0000, v%d" % (vP + 9 + 2 * k, vP + k))
        e("v_lshlrev_b32 v%d, 16, v%d" % (vP + 12 + 2 * k, vP + 2 + k))
        e("v_and_b32 v%d, 0xffff0000, v%d" % (vP + 13 + 2 * k, vP + 2 + k))
        e("v_lshlrev_b32 v%d, 16, v%d" % (vVt + 2 * k, vP + 4 + k))
        e("v_and_b32 v%d, 0xffff0000, v%d" % (vVt + 1 + 2 * k, vP + 4 + k))
    e("v_mul_f32 v%d, v%d, v%d" % (vF, vP + 8, vP + 12))
    for k in range(1, 4):
        e("v_fmac_f32 v%d, v%d, v%d" % (vF, vP + 8 + k, vP + 12 + k))
    for st in STEPS:
        e("s_nop 1")
        e("v_add_f32_dpp v%d, v%d, v%d %s %s" % (vF, vF, vF, st, DPP))
    e("v_mov_b32 v%d, v%d" % (vT0, vF))
    e("s_nop 1")
    e("v_permlane16_swap_b32 v%d, v%d" % (vF, vT0))
    e("s_nop 0")
    e("v_add_f32 v%d, v%d, v%d" % (vF, vF, vT0))
    e("s_lshr_b32 s3, s%d, 4" % sBH)
    e("s_lshl_b32 s3, s3, 4")
    e("s_lshr_b32 s%d, s%d, s3" % (sMaskV, sMaskV))
    e("s_lshl_b32 s%d, s%d, 16" % (sMaskV, sMaskV))
    e("v_mov_b32 v%d, %s" % (vT1, f32(-1e9 * 128 ** 0.5)))
    e("v_sub_f32 v%d, 1.0, s%d" % (vT0, sMaskV))
    e("v_fmac_f32 v%d, v%d, v%d" % (vF, vT0, vT1))
    setexec(0x08000800)
    e("v_mul_f32 v%d, s%d, v%d" % (vM, sC, vF))
    e("v_mov_b32 v%d, 1.0" % vSum)
    e("s_barrier")
    stamp(4)
    setexec(0x000f000f)
    e("ds_read_b64 %s, v%d offset:%d" % (R2(vM), vT2, LDS_ML))
    e("s_waitcnt lgkmcnt(0)")
    setexec(0x07f007f0)
    e("L_cml:")
    e("global_load_dwordx2 %s, v%d, %s sc1" % (R2(vM), vMLa, S2(sWs)))
    e("s_sub_u32 s%d, s%d, 1" % (sCnt, sCnt))
    e("s_cbranch_scc1 L_cml_done")
    e("s_waitcnt vmcnt(0)")
    e("v_max_u32 v%d, v%d, v%d" % (vT0, vM, vSum))
    e("v_cmp_eq_u32 vcc, -1, v%d" % vT0)
    e("s_cbranch_vccnz L_cml")
    e("L_cml_done:")
    e("s_waitcnt vmcnt(0)")
    setexec(0xffffffff)
    weights(4)
    e("v_rcp_f32 v%d, v%d" % (vSum, vSum))
    e("s_nop 0")
    e("v_mul_f32 v%d, v%d, v%d" % (vF, vF, vSum))
    e("s_nop 1")
    for w in range(12):
        e("v_mov_b32_dpp v%d, v%d row_newbcast:%d %s" % (vW + w, vF, w, DPP))
    pkfma(vAcc, 11, vVt, None)
    e("s_mov_b32 s%d, %d" % (sCnt, SPIN))
    stamp(7)
    e("s_barrier")
    stamp(6)

    def polls():
        for s in range(1, 8):
            e("global_load_dwordx4 %s, v%d, %s offset:%d %s" % (R4(vP + 12 + 4 * s), vOa, S2(sWs), s * 1024 - 4096, POLLF))

    for w in range(4):
        e("ds_read_b128 %s, v%d offset:%d" % (R4(vP + 4 * w), vO16, 1024 * w))
    polls()
    for w in range(4):
        e("s_waitcnt lgkmcnt(%d)" % (3 - w))
        pkfma(vAcc, w, vP + 4 * w, vAcc)
    e("L_cpoll:")
    for s in range(1, 8):
        vm(7 - s)
        pkfma(vAc2, 3 + s, vP + 12 + 4 * s, vAcc if s == 1 else vAc2)
    e("v_pk_add_f32 %s, %s, %s" % (R2(vT0), R2(vAc2), R2(vAc2 + 2)))
    e("v_cvt_pk_bf16_f32 v%d, v%d, v%d" % (vM, vAc2, vAc2 + 1))
    e("v_cmp_u_f32 vcc, v%d, v%d" % (vT0, vT1))
    e("v_cvt_pk_bf16_f32 v%d, v%d, v%d" % (vM + 1, vAc2 + 2, vAc2 + 3))
    e("s_cbranch_vccnz L_cretry")
    e("L_cout:")
    stamp(8)
    e("global_store_dwordx2 v%d, %s, %s %s" % (vOut, R2(vM), S2(sOut), OUTF))
    stamp(9)
    e("s_branch L_fin" if STAMP else "s_endpgm")
    e("L_cretry:")
    e("s_sub_u32 s%d, s%d, 1" % (sCnt, sCnt))
    e("s_cbranch_scc1 L_cout")
    e("s_and_b32 s3, s%d, 31" % sCnt)
    e("s_cbranch_scc1 L_cagain")
    b = vP + 16
    e("v_max3_u32 v%d, v%d, v%d, v%d" % (vT0, b, b + 1, b + 2))
    for k in range(3, 27, 2):
        e("v_max3_u32 v%d, v%d, v%d, v%d" % (vT0, vT0, b + k, b + k + 1))
    e("v_max_u32 v%d, v%d, v%d" % (vT0, vT0, b + 27))
    e("v_cmp_eq_u32 vcc, -1, v%d" % vT0)
    e("s_cbranch_vccz L_cout")
    e("L_cagain:")
    polls()
    e("s_branch L_cpoll")

    if STAMP:
        e("L_fin:")
        e("s_waitcnt vmcnt(0) lgkmcnt(0)")
        e("s_memrealtime s[60:61]")
        e("s_getreg_b32 s62, hwreg(HW_REG_XCC_ID)")
        e("s_mov_b32 s63, s%d" % sCnt)
        e("s_waitcnt lgkmcnt(0)")
        if PAD:
            e("s_mov_b32 s39, %d" % PAD)
            if CH >= 0:
                e("s_sub_u32 s3, s%d, s%d" % (40 + 2 * CH, 40 + 2 * CH0))
                e("s_cmp_eq_u32 s%d, 0" % (40 + 2 * CH))
                e("s_cselect_b32 s3, 0, s3")
                e("s_cmp_eq_u32 s%d, 0" % (40 + 2 * CH0))
                e("s_cselect_b32 s3, 0, s3")
                e("s_min_u32 s3, s3, 3000")
                e("s_lshl_b32 s3, s3, 2")
                e("s_add_u32 s39, s39, s3")
            e("L_pad:")
            e("s_sleep 2")
            e("s_memrealtime s[60:61]")
            e("s_waitcnt lgkmcnt(0)")
            e("s_sub_u32 s3, s60, s40")
            e("s_cmp_lt_u32 s3, s39")
            e("s_cbranch_scc1 L_pad")
            e("s_endpgm")
        e("s_mul_i32 s3, s2, 5")
        e("s_add_u32 s3, s3, s%d" % sWave)
        e("s_lshl_b32 s3, s3, 7")
        e("s_add_u32 s3, s3, %d" % WS_STAMP)
        e("s_mov_b64 exec, 1")
        e("v_mov_b32 v1, s3")
        for k in range(0, 12, 2):
            for q in range(4):
                e("v_mov_b32 v%d, s%d" % (4 + q, 40 + 2 * k + q))
            e("global_store_dwordx4 v1, v[4:7], %s offset:%d" % (S2(sWs), 8 * k))
            e("s_nop 1")
    e("L_end:")
    e("s_endpgm")
    tot = max(nv, NVGPR)
    e('.section .rodata,"a"')
    e(".p2align 6")
    e(".amdhsa_kernel %s" % KNAME)
    e("  .amdhsa_next_free_vgpr %d" % tot)
    e("  .amdhsa_next_free_sgpr %d" % (64 if STAMP else 32))
    e("  .amdhsa_accum_offset %d" % ((tot + 3) // 4 * 4))
    e("  .amdhsa_group_segment_fixed_size 0")
    e("  .amdhsa_kernarg_size 72")
    e("  .amdhsa_user_sgpr_count 2")
    e("  .amdhsa_user_sgpr_kernarg_segment_ptr 1")
    e("  .amdhsa_system_sgpr_workgroup_id_x 1")
    e("  .amdhsa_float_denorm_mode_32 3")
    e(".end_amdhsa_kernel")
    return "\n".join(("    " + l if not (l.startswith((";", ".", " ")) or l.endswith(":")) else l) for l in o) + "\n"


if __name__ == "__main__":
    kw = {}
    for a in sys.argv[2:]:
        k, v = a.split("=", 1)
        kw[k] = int(v) if v.lstrip("-").isdigit() else (v == "True" if v in ("True", "False") else v)
    open(sys.argv[1], "w").write(gen(**kw))
```

```python
import math, struct, sys

KNAME = "standalone__tree_speculative_verify_tree_attention_over_candidate_token_tree__decode_kernel"
HDR = open("standalone__tree_speculative_verify_tree_attention_over_candidate_token_tree__decode.s.ref").read().split("; Override launch")[0]
DPP = "row_mask:0xf bank_mask:0xf"


def f32(x):
    return "0x%08x" % struct.unpack("<I", struct.pack("<f", x))[0]


def runs(srcs):
    out = []
    for d, r, s in srcs:
        if out and out[-1][1] == r and out[-1][0] + out[-1][3] == d and out[-1][2] + out[-1][3] == s:
            out[-1][3] += 1
        else:
            out.append([d, r, s, 1])
    return out


def gen(PATS="jjwwjjjsss", WGMAP="bbbbbsss", XSH=5, R=16, NT="nt", FAST=True, ASTEP=8, NVGPR=0,
        STAMP=False, PAD=0, CH=-1, CH0=0, OUTF="", POLLF="sc1", SPIN=1 << 16, FLAG="smem", HPRIO=0, CHS=2, CHW="", OUTBOX=True, TLBW=False, QPOS=0, B0=-1, CPF="", DIAG="", XW="", XJ=0, PROTO=2, TOUCH="full", LITE=False, BORD="01234", TLBO=False, EXPR=1, PIPE=1):
    assert PATS.startswith("jj") and len(PATS) == 10 and (XSH < 0 or XSH >= 2)
    NW, NL = 4, 32
    CODESZ = 6656
    o = []
    e = o.append
    R4 = lambda b: "v[%d:%d]" % (b, b + 3)
    R2 = lambda b: "v[%d:%d]" % (b, b + 1)
    S2 = lambda b: "s[%d:%d]" % (b, b + 1)
    vL, vT0, vT1, vT2, vT3 = 1, 2, 3, 4, 5
    vKb, vVb, vA, vB = 6, 7, 8, 9
    vM, vSum = 10, 11
    vMask, vAcc, vQ, vPd = 12, 16, 20, 24
    vS = 32
    vT = vS + NL
    vR = vT + 32
    nv = vR + 4 * R
    slot = lambda i: vR + 4 * (i % R)
    sQ, sK, sV, sKt, sVt, sMk, sOut, sDbg, sWs = 4, 6, 8, 10, 12, 14, 16, 18, 20
    sBH, sSplit, sWave, sBase, sC, sMaskV, sXcc, sCnt = 22, 23, 24, 25, 26, 27, 28, 29
    LDS_ML = NW * 1024
    lds_bytes = NW * 1024 + 64
    WS_ML = 32 * 8192
    WS_STAMP = 1 << 20
    CEXP = 128 ** -0.5 * math.log2(math.e)

    def stamp(k):
        if STAMP and (k == 0 or not LITE):
            e("s_memrealtime s[%d:%d]" % (40 + 2 * k, 41 + 2 * k))

    def vm(n):
        e("s_waitcnt vmcnt(%d)" % min(n, 63))

    def setexec(lo, hi=None):
        hi = lo if hi is None else hi
        if lo == hi == 0xffffffff:
            e("s_mov_b64 exec, -1")
        else:
            e("s_mov_b32 exec_lo, 0x%x" % lo)
            e("s_mov_b32 exec_hi, 0x%x" % hi)

    e(HDR.rstrip())
    e("; @launch grid=(256,1,1) block=(320,1,1) lds=%d" % lds_bytes)
    e('.amdgcn_target "amdgcn-amd-amdhsa--gfx950"')
    e(".text")
    e(".globl %s" % KNAME)
    e(".p2align 8")
    e(".type %s,@function" % KNAME)
    e("%s:" % KNAME)
    if STAMP:
        for k in range(42, 60, 2):
            e("s_mov_b64 s[%d:%d], 0" % (k, k + 1))
    stamp(0)
    e("s_cmp_ge_u32 s2, 256")
    e("s_cbranch_scc1 L_end")
    e("s_load_dwordx8 s[4:11], s[0:1], 0")
    if STAMP:
        e("s_load_dwordx2 %s, s[0:1], 64" % S2(sWs))
    e("v_lshrrev_b32 v%d, 6, v0" % vT0)
    e("v_and_b32 v%d, 63, v0" % vL)
    e("v_readfirstlane_b32 s%d, v%d" % (sWave, vT0))

    def gather(dst, items):
        first = True
        for d, r, s, w in runs(items):
            t = dst if first else 3
            e("s_bfe_u32 s%d, s%d, 0x%x" % (t, r, s | (w << 16)))
            if d:
                e("s_lshl_b32 s%d, s%d, %d" % (t, t, d))
            if not first:
                e("s_or_b32 s%d, s%d, s3" % (dst, dst))
            first = False

    bpos = [i for i, c in enumerate(WGMAP) if c == "b"]
    gather(sBH, [(k, 2, bpos[str(BORD).zfill(5).index(str(k))]) for k in range(5)])
    gather(sSplit, [(k, 2, p) for k, p in enumerate(i for i, c in enumerate(WGMAP) if c == "s")])
    e("s_mov_b32 s%d, %s" % (sC, f32(CEXP)))
    e("s_cmp_eq_u32 s%d, 4" % sWave)
    e("s_cbranch_scc1 L_helper")
    items, cnt, jpos = [], {"w": 0, "s": 0}, []
    for p, c in enumerate(PATS):
        if c == "j":
            jpos.append(p)
        else:
            items.append((p + 10, sWave if c == "w" else sSplit, cnt[c]))
            cnt[c] += 1
    items += [(20 + k, sBH, k) for k in range(5)]
    gather(sBase, items)
    if XSH >= 0:
        e("s_lshl_b32 s3, s%d, %d" % (sBH, XSH + 10))
        if XSH > 5:
            e("s_and_b32 s3, s3, 0xfffff")
        e("s_xor_b32 s%d, s%d, s3" % (sBase, sBase))
    if XW:
        for c in XW:
            e("s_bfe_u32 s3, s%d, 0x%x" % ((sBH, 0x20003) if c == "b" else (sSplit, 0x20001)))
            e("s_lshl_b32 s3, s3, 12")
            e("s_xor_b32 s%d, s%d, s3" % (sBase, sBase))
    D = lambda j: sum(((j >> k) & 1) << (p + 10) for k, p in enumerate(jpos)) ^ ((((j >> 2) & 3) << 12) if XJ else 0)
    e("v_lshl_add_u32 v%d, v%d, 4, s%d" % (vVb, vL, sBase))
    e("v_bfe_u32 v%d, v0, 4, 2" % vT1)
    e("v_and_b32 v%d, 3, v0" % vT2)
    e("v_bfe_u32 v%d, v0, 2, 2" % vT3)
    e("v_lshlrev_b32 v%d, 6, v%d" % (vT1, vT1))
    e("v_lshl_add_u32 v%d, v%d, 4, v%d" % (vT1, vT2, vT1))
    e("v_lshl_add_u32 v%d, v%d, 8, s%d" % (vKb, vT3, sBase))
    e("v_add_u32 v%d, v%d, v%d" % (vKb, vKb, vT1))
    e("v_bfe_u32 v%d, v0, 3, 1" % vT3)
    e("s_lshl_b32 s3, s%d, 9" % sBH)
    e("v_lshl_add_u32 v%d, v%d, 8, v%d" % (vT1, vT3, vT1))
    e("v_add_u32 v%d, s3, v%d" % (vT1, vT1))
    stamp(4)
    e("s_waitcnt lgkmcnt(0)")
    stamp(1)

    def issue(i):
        kv, j = divmod(i, NL)
        base = vVb if kv else vKb
        addr = base
        if j >= 4:
            addr = vA
            if j % 4 == 0:
                e("v_xor_b32 v%d, 0x%x, v%d" % (vA, D(j), base))
        e("global_load_dwordx4 %s, v%d, %s offset:%d %s" % (R4(slot(i)), addr, S2(sV if kv else sK), (j % 4) * 1024, NT))

    if QPOS < 0:
        e("global_load_dwordx4 %s, v%d, %s" % (R4(vQ), vT1, S2(sQ)))
    for i in range(R):
        issue(i)
        if i == QPOS:
            e("global_load_dwordx4 %s, v%d, %s" % (R4(vQ), vT1, S2(sQ)))
        if i == B0:
            e("s_barrier")
        if i == 7:
            stamp(6)
    e("v_and_b32 v%d, 1, v0" % vT0)
    e("v_lshlrev_b32 v%d, 4, v%d" % (vT0, vT0))
    e("v_mov_b32 v%d, 0xffff" % vT1)
    e("v_lshlrev_b32 v%d, v%d, v%d" % (vT0, vT0, vT1))
    e("v_bfe_u32 v%d, v0, 1, 2" % vT1)
    for r in range(4):
        e("v_cmp_eq_u32 vcc, %d, v%d" % (r, vT1))
        e("s_nop 1")
        e("v_cndmask_b32 v%d, 0, v%d, vcc" % (vMask + r, vT0))
    e("v_lshlrev_b32 v%d, 5, v%d" % (vT2, vT3))
    e("s_lshl_b32 s3, s%d, 3" % sWave)
    e("v_add_u32 v%d, s3, v%d" % (vT2, vT2))
    e("v_lshlrev_b32 v%d, 4, v0" % vT3)

    T = lambda g, r: vT + 16 * (g % 2) + 4 * r
    mark = len(o)

    def dppround(g, c):
        for r in range(4):
            d, s = vS + 4 * g + r, T(g, r)
            if c == 0:
                e("v_mov_b32_dpp v%d, v%d quad_perm:[0,0,0,0] %s" % (d, s, DPP))
            else:
                e("v_add_f32_dpp v%d, v%d, v%d quad_perm:[%d,%d,%d,%d] %s" % (d, s + c, d, c, c, c, c, DPP))

    def maxg(g):
        b = vS + 4 * g
        if g == 0:
            e("v_max3_f32 v%d, v%d, v%d, v%d" % (vM, b, b + 1, b + 2))
            e("v_max_f32 v%d, v%d, v%d" % (vM, vM, b + 3))
        else:
            e("v_max3_f32 v%d, v%d, v%d, v%d" % (vM, vM, b, b + 1))
            e("v_max3_f32 v%d, v%d, v%d, v%d" % (vM, vM, b + 2, b + 3))

    for g in range(8):
        for r in range(4):
            i = 4 * g + r
            if i == 0:
                vm(R - 1 - max(QPOS, 0))
            elif i > QPOS:
                vm(R - 1)
            if i == 0:
                stamp(7)
            e("v_mfma_f32_16x16x32_bf16 %s, %s, %s, 0" % (R4(T(g, r)), R4(slot(i)), R4(vQ)))
            issue(i + R)
            if i + R == B0:
                e("s_barrier")
            if g == 0 and r == 3:
                e("s_nop 4")
            if g > 0:
                dppround(g - 1, r)
        if g > 0:
            maxg(g - 1)
    stamp(3)
    for c in range(4):
        dppround(7, c)
    maxg(7)

    def xg(reg, op):
        for sw in ("v_permlane32_swap_b32", "v_permlane16_swap_b32"):
            e("v_mov_b32 v%d, v%d" % (vT0, reg))
            e("s_nop 1")
            e("%s v%d, v%d" % (sw, reg, vT0))
            e("s_nop 0")
            e("%s v%d, v%d, v%d" % (op, reg, reg, vT0))

    xg(vM, "v_max_f32")
    e("v_mul_f32 v%d, s%d, v%d" % (vM, sC, vM))

    def expg(g):
        b = vS + 4 * g
        for r in range(4):
            e("v_fma_f32 v%d, v%d, s%d, -v%d" % (b + r, b + r, sC, vM))
        for r in range(4):
            e("v_exp_f32 v%d, v%d" % (b + r, b + r))
        if g == 0:
            e("v_add_f32 v%d, v%d, v%d" % (vSum, b, b + 1))
        else:
            e("v_add_f32 v%d, v%d, v%d" % (vSum, vSum, b))
            e("v_add_f32 v%d, v%d, v%d" % (vSum, vSum, b + 1))
        e("v_add_f32 v%d, v%d, v%d" % (vSum, vSum, b + 2))
        e("v_add_f32 v%d, v%d, v%d" % (vSum, vSum, b + 3))
        for r in range(4):
            e("v_cvt_pk_bf16_f32 v%d, v%d, v%d" % (b + r, b + r, b + r))

    Pd = lambda i: (vT + 4 * (i - 24)) if i >= 24 else (vPd + 4 * (i % 2))

    def mkpd(i):
        for r in range(4):
            e("v_and_b32 v%d, v%d, v%d" % (Pd(i) + r, vMask + r, vS + i))

    expg(0)
    mkpd(0)
    for i in range(NL):
        for gg in range(1 + i * EXPR, min(8, 1 + (i + 1) * EXPR)):
            expg(gg)
        if i + 1 < 24:
            mkpd(i + 1)
        if 8 <= i < 16:
            mkpd(i + 16)
        assert ASTEP >= 6 // EXPR
        if i == min(ASTEP, 6 // EXPR + 1):
            xg(vSum, "v_add_f32")
            setexec(0x101, 0)
            e("ds_write_b64 v%d, %s offset:%d" % (vT2, R2(vM), LDS_ML))
            setexec(0xffffffff)
        if i == ASTEP and "a" not in DIAG:
            e("s_waitcnt lgkmcnt(0)")
            e("s_barrier")
        vm(min(R - 1, NL - 1 - i))
        e("v_mfma_f32_16x16x32_bf16 %s, %s, %s, %s" % (R4(vAcc), R4(Pd(i)), R4(slot(NL + i)), R4(vAcc) if i else "0"))
        if NL + i + R < 2 * NL:
            issue(NL + i + R)
            if NL + i + R == 2 * NL - 1:
                stamp(2)
    if "c" in DIAG:
        o[mark:] = [l for l in o[mark:] if not l.startswith(("v_mov_b32_dpp", "v_add_f32", "v_max", "v_fma", "v_exp", "v_cvt", "v_and", "v_mul", "v_perm", "s_nop", "v_mov"))]
    if "m" in DIAG:
        o[mark:] = [l for l in o[mark:] if not l.startswith(("v_mfma",))]
    stamp(5)
    e("s_nop 7")
    e("ds_write_b128 v%d, %s" % (vT3, R4(vAcc)))
    e("s_waitcnt lgkmcnt(0)")
    e("s_barrier")
    e("s_branch L_fin" if STAMP else "s_endpgm")

    vH, vO16, vOa, vMLa, vOut = 6, 7, 8, 9, 12
    vF, vMx = 13, 14
    vVt = 20
    vW = 24
    vP = 40
    vAc2 = 36
    e("L_helper:")
    if HPRIO:
        e("s_setprio %d" % HPRIO)
    e("s_load_dwordx8 s[12:19], s[0:1], 32")
    e("s_load_dwordx2 %s, s[0:1], 64" % S2(sWs))
    if CPF:
        e("s_getpc_b64 s[30:31]")
        e("L_pc:")
        e("s_sub_u32 s30, s30, L_pc-%s" % KNAME)
        e("s_subb_u32 s31, s31, 0")
    if CPF == "v":
        e("v_lshlrev_b32 v%d, 7, v%d" % (vF, vL))
        e("v_min_u32 v%d, L_end-%s, v%d" % (vF, KNAME, vF))
        e("global_load_dword v%d, v%d, s[30:31]" % (vMx, vF))
    elif CPF == "s":
        e("s_bfe_u32 s3, s2, 0x20003")
        e("s_lshl_b32 s3, s3, 7")
        e("s_add_u32 s30, s30, s3")
        e("s_addc_u32 s31, s31, 0")
        e(".set cpf_i, 0")
        e(".rept 14")
        e(".if cpf_i*512+512 <= %d" % CODESZ)
        e("s_load_dword s3, s[30:31], cpf_i*512")
        e(".endif")
        e(".set cpf_i, cpf_i+1")
        e(".endr")
        e("s_waitcnt lgkmcnt(0)")
    if "h" in DIAG:
        e("s_branch L_fin")
    if "H" in DIAG:
        e("s_barrier")
        e("s_barrier")
        e("s_branch L_fin")
    e("s_getreg_b32 s%d, hwreg(HW_REG_XCC_ID, 0, 4)" % sXcc)
    e("s_or_b32 s%d, s%d, 0x100" % (sXcc, sXcc))
    e("v_lshrrev_b32 v%d, 5, v%d" % (vH, vL))
    e("v_lshlrev_b32 v%d, 4, v%d" % (vO16, vL))
    e("v_and_b32 v%d, 15, v0" % vT0)
    e("s_lshl_b32 s3, s%d, 13" % sBH)
    e("s_add_u32 s3, s3, 4096")
    e("v_add_u32 v%d, s3, v%d" % (vOa, vO16))
    e("s_lshl_b32 s3, s%d, %d" % (sBH, 8 if PROTO == 3 else 7))
    e("s_add_u32 s3, s3, %d" % WS_ML)
    e("v_lshl_add_u32 v%d, v%d, 6, s3" % (vMLa, vH))
    e("v_and_b32 v%d, 3, v0" % vT2)
    e("v_lshlrev_b32 v%d, 3, v%d" % (vT2, vT2))
    e("v_lshl_add_u32 v%d, v%d, 5, v%d" % (vT2, vH, vT2))
    e("s_lshl_b32 s3, s%d, 3" % sBH)
    e("v_mov_b32 v%d, s3" % vT3)
    e("v_mov_b32 v%d, 0xff800000" % vM)
    e("v_mov_b32 v%d, 0" % vSum)
    e("s_mov_b32 s%d, %d" % (sCnt, SPIN))
    e("s_cmp_eq_u32 s%d, 0" % sSplit)
    e("s_waitcnt lgkmcnt(0)")
    if B0 >= 0:
        e("s_barrier")
    if TLBW:
        e("v_lshlrev_b32 v%d, 17, v%d" % (vF, vT3))
        e("global_load_dword v%d, v%d, %s nt" % (vMx, vF, S2(sV)))
    e("s_cbranch_scc1 L_cons")

    STEPS = ["quad_perm:[1,0,3,2]", "quad_perm:[2,3,0,1]", "row_half_mirror", "row_mirror"]

    def weights(nsteps):
        for k, st in enumerate(STEPS[:nsteps]):
            src = vM if k == 0 else vMx
            e("s_nop 1")
            e("v_max_f32_dpp v%d, v%d, v%d %s %s" % (vMx, src, src, st, DPP))
        e("v_sub_f32 v%d, v%d, v%d" % (vF, vM, vMx))
        e("v_exp_f32 v%d, v%d" % (vF, vF))
        e("s_nop 0")
        e("v_mul_f32 v%d, v%d, v%d" % (vSum, vF, vSum))
        for st in STEPS[:nsteps]:
            e("s_nop 1")
            e("v_add_f32_dpp v%d, v%d, v%d %s %s" % (vSum, vSum, vSum, st, DPP))

    def pkfma(dst, w, src, cin):
        wb, sel = vW + (w & ~1), w & 1
        for hh in (0, 2):
            if cin is None:
                e("v_pk_mul_f32 %s, %s, %s op_sel:[%d,0] op_sel_hi:[%d,1]" % (R2(dst + hh), R2(wb), R2(src + hh), sel, sel))
            else:
                e("v_pk_fma_f32 %s, %s, %s, %s op_sel:[%d,0,0] op_sel_hi:[%d,1,1]" % (R2(dst + hh), R2(wb), R2(src + hh), R2(cin + hh), sel, sel))

    e("s_lshl_b32 s3, s%d, 10" % sSplit)
    e("v_add_u32 v%d, s3, v%d" % (vOa, vOa))
    e("s_lshl_b32 s3, s%d, 3" % sSplit)
    e("v_add_u32 v%d, s3, v%d" % (vMLa, vMLa))
    if OUTBOX:
        for r in range(4):
            e("v_mov_b32 v%d, -1" % (vAcc + r))
        if PROTO == 3:
            e("global_store_dwordx4 v%d, %s, %s offset:-4096" % (vOa, R4(vAcc), S2(sWs)))
            if TOUCH == "full":
                e("global_load_dwordx4 %s, v%d, %s offset:-4096 sc1" % (R4(vP), vOa, S2(sWs)))
            elif TOUCH == "q":
                setexec(0x11111111)
                e("global_load_dword v%d, v%d, %s offset:-4096 sc1" % (vP, vOa, S2(sWs)))
                setexec(0xffffffff)
            elif TOUCH == "o":
                setexec(0x01010101)
                e("global_load_dword v%d, v%d, %s offset:-4096 sc1" % (vP, vOa, S2(sWs)))
                setexec(0xffffffff)
        elif "z" not in DIAG:
            e("global_store_dwordx4 v%d, %s, %s offset:-4096 %s" % (vOa, R4(vAcc), S2(sWs), "" if "p" in DIAG else "sc1 nt" if "n" in DIAG else "sc1"))
        e("s_waitcnt vmcnt(0)")
    e("s_barrier")
    stamp(4)
    e("ds_read_b64 %s, v%d offset:%d" % (R2(vM), vT2, LDS_ML))
    if FLAG == "smem":
        e("s_lshl_b32 s30, s%d, 3" % sBH)
        e("s_load_dword s3, %s, s30" % S2(sDbg))
        e("s_waitcnt lgkmcnt(0)")
        e("s_cmp_lg_u32 s3, 0")
        e("s_cbranch_scc1 L_pflag_done")
    elif FLAG == "none":
        e("s_mov_b32 s3, s%d" % sXcc)
        e("s_branch L_pflag_done")
    e("L_pflag:")
    e("global_load_dword v%d, v%d, %s sc1" % (vT0, vT3, S2(sDbg)))
    e("s_sub_u32 s%d, s%d, 1" % (sCnt, sCnt))
    e("s_cbranch_scc1 L_pflag_done")
    e("s_waitcnt vmcnt(0)")
    e("v_readfirstlane_b32 s3, v%d" % vT0)
    e("s_cmp_eq_u32 s3, 0")
    e("s_cbranch_scc1 L_pflag")
    e("L_pflag_done:")
    e("s_waitcnt lgkmcnt(0)")
    weights(2)
    e("v_mov_b32 v%d, v%d" % (vMx + 1, vSum))
    if PROTO == 3:
        e("s_cmp_eq_u32 s3, s%d" % sXcc)
        if FAST:
            e("s_cbranch_scc1 L_pmlfast")
        e("global_store_dwordx4 v%d, %s, %s offset:-4096 sc1" % (vOa, R4(vAcc), S2(sWs)))
        e("s_waitcnt vmcnt(0)")
        setexec(1, 1)
        e("global_store_dwordx2 v%d, %s, %s offset:128 sc1" % (vMLa, R2(vMx), S2(sWs)))
        e("s_branch L_pmldone")
        e("L_pmlfast:")
        setexec(1, 1)
        e("global_store_dwordx2 v%d, %s, %s" % (vMLa, R2(vMx), S2(sWs)))
        e("L_pmldone:")
    else:
        setexec(1, 1)
        e("global_store_dwordx2 v%d, %s, %s %s" % (vMLa, R2(vMx), S2(sWs), "" if "q" in DIAG else "sc1"))
    setexec(0xffffffff)
    for w in range(4):
        e("v_mov_b32_dpp v%d, v%d row_newbcast:%d %s" % (vW + w, vF, w, DPP))
    e("s_cmp_eq_u32 s3, s%d" % sXcc)
    stamp(7)
    e("s_barrier")
    stamp(6)
    for w in range(4):
        e("ds_read_b128 %s, v%d offset:%d" % (R4(vP + 4 * w), vO16, 1024 * w))
    for w in range(4):
        e("s_waitcnt lgkmcnt(%d)" % (3 - w))
        pkfma(vAcc, w, vP + 4 * w, vAcc if w else None)
    if FAST:
        e("s_cbranch_scc1 L_pfast")
    e("global_store_dwordx4 v%d, %s, %s offset:-4096 sc1" % (vOa, R4(vAcc), S2(sWs)))
    stamp(9)
    e("s_branch L_fin" if STAMP else "s_endpgm")
    if FAST:
        e("L_pfast:")
        e("global_store_dwordx4 v%d, %s, %s offset:-4096" % (vOa, R4(vAcc), S2(sWs)))
        stamp(9)
        e("s_branch L_fin" if STAMP else "s_endpgm")

    e("L_cons:")
    e("s_load_dword s%d, %s, 0" % (sMaskV, S2(sMk)))
    for r in range(4):
        e("v_mov_b32 v%d, -1" % (vAcc + r))
    for s in range(1, 8):
        if not OUTBOX:
            e("global_store_dwordx4 v%d, %s, %s offset:%d sc1" % (vOa, R4(vAcc), S2(sWs), s * 1024 - 4096))
    e("v_lshl_add_u32 v%d, v%d, 3, v%d" % (vT1, vT0, vMLa))
    setexec(0xff, 0xff)
    if PROTO == 3:
        e("global_store_dwordx2 v%d, %s, %s" % (vT1, R2(vAcc), S2(sWs)))
        e("global_store_dwordx2 v%d, %s, %s offset:128 sc1" % (vT1, R2(vAcc), S2(sWs)))
        if TOUCH:
            e("global_load_dwordx2 %s, v%d, %s sc1" % (R2(vP + 6), vT1, S2(sWs)))
    else:
        e("global_store_dwordx2 v%d, %s, %s sc1" % (vT1, R2(vAcc), S2(sWs)))
    setexec(0xffffffff)
    e("v_add_u32 v%d, -24, v%d" % (vMLa, vT1))
    e("v_bfe_u32 v%d, v0, 4, 1" % vT1)
    e("v_lshlrev_b32 v%d, 3, v%d" % (vT1, vT1))
    e("v_lshl_add_u32 v%d, v%d, 4, v%d" % (vT1, vT0, vT1))
    e("s_lshl_b32 s3, s%d, 8" % sBH)
    e("v_add_u32 v%d, s3, v%d" % (vT1, vT1))
    e("v_lshl_add_u32 v%d, v%d, 8, v%d" % (vOut, vH, vT1))
    e("v_add_u32 v%d, s3, v%d" % (vOut, vOut))
    e("global_load_dwordx2 %s, v%d, %s" % (R2(vP), vOut, S2(sQ)))
    e("global_load_dwordx2 %s, v%d, %s" % (R2(vP + 2), vT1, S2(sKt)))
    e("global_load_dwordx2 %s, v%d, %s" % (R2(vP + 4), vT1, S2(sVt)))
    if TLBW or TLBO:
        e("global_load_dword v%d, v%d, %s" % (vMx, vOut, S2(sOut)))
    e("v_mov_b32 v%d, s%d" % (vT0, sXcc))
    e("s_waitcnt vmcnt(0) lgkmcnt(0)")
    setexec(1, 0)
    e("global_store_dword v%d, v%d, %s sc1" % (vT3, vT0, S2(sDbg)))
    setexec(0xffffffff)
    for k in range(2):
        e("v_lshlrev_b32 v%d, 16, v%d" % (vP + 8 + 2 * k, vP + k))
        e("v_and_b32 v%d, 0xffff0000, v%d" % (vP + 9 + 2 * k, vP + k))
        e("v_lshlrev_b32 v%d, 16, v%d" % (vP + 12 + 2 * k, vP + 2 + k))
        e("v_and_b32 v%d, 0xffff0000, v%d" % (vP + 13 + 2 * k, vP + 2 + k))
        e("v_lshlrev_b32 v%d, 16, v%d" % (vVt + 2 * k, vP + 4 + k))
        e("v_and_b32 v%d, 0xffff0000, v%d" % (vVt + 1 + 2 * k, vP + 4 + k))
    e("v_mul_f32 v%d, v%d, v%d" % (vF, vP + 8, vP + 12))
    for k in range(1, 4):
        e("v_fmac_f32 v%d, v%d, v%d" % (vF, vP + 8 + k, vP + 12 + k))
    for st in STEPS:
        e("s_nop 1")
        e("v_add_f32_dpp v%d, v%d, v%d %s %s" % (vF, vF, vF, st, DPP))
    e("v_mov_b32 v%d, v%d" % (vT0, vF))
    e("s_nop 1")
    e("v_permlane16_swap_b32 v%d, v%d" % (vF, vT0))
    e("s_nop 0")
    e("v_add_f32 v%d, v%d, v%d" % (vF, vF, vT0))
    e("s_lshr_b32 s3, s%d, 4" % sBH)
    e("s_lshl_b32 s3, s3, 4")
    e("s_lshr_b32 s%d, s%d, s3" % (sMaskV, sMaskV))
    e("s_lshl_b32 s%d, s%d, 16" % (sMaskV, sMaskV))
    e("v_mov_b32 v%d, %s" % (vT1, f32(-1e9 * 128 ** 0.5)))
    e("v_sub_f32 v%d, 1.0, s%d" % (vT0, sMaskV))
    e("v_fmac_f32 v%d, v%d, v%d" % (vF, vT0, vT1))
    setexec(0x08000800)
    e("v_mul_f32 v%d, s%d, v%d" % (vM, sC, vF))
    e("v_mov_b32 v%d, 1.0" % vSum)
    e("s_barrier")
    stamp(4)
    setexec(0x000f000f)
    e("ds_read_b64 %s, v%d offset:%d" % (R2(vM), vT2, LDS_ML))
    e("s_waitcnt lgkmcnt(0)")
    setexec(0x07f007f0)
    e("L_cml:")
    e("global_load_dwordx2 %s, v%d, %s sc1" % (R2(vM), vMLa, S2(sWs)))
    if PROTO == 3:
        e("global_load_dwordx2 %s, v%d, %s offset:128 sc1" % (R2(vP), vMLa, S2(sWs)))
    e("s_sub_u32 s%d, s%d, 1" % (sCnt, sCnt))
    e("s_cbranch_scc1 L_cml_done")
    e("s_waitcnt vmcnt(0)")
    if PROTO == 3:
        e("v_and_b32 v%d, v%d, v%d" % (vM, vM, vP))
        e("v_and_b32 v%d, v%d, v%d" % (vSum, vSum, vP + 1))
    e("v_max_u32 v%d, v%d, v%d" % (vT0, vM, vSum))
    e("v_cmp_eq_u32 vcc, -1, v%d" % vT0)
    if "y" not in DIAG:
        e("s_cbranch_vccnz L_cml")
    e("L_cml_done:")
    e("s_waitcnt vmcnt(0)")
    setexec(0xffffffff)
    weights(4)
    e("v_rcp_f32 v%d, v%d" % (vSum, vSum))
    e("s_nop 0")
    e("v_mul_f32 v%d, v%d, v%d" % (vF, vF, vSum))
    e("s_nop 1")
    for w in range(12):
        e("v_mov_b32_dpp v%d, v%d row_newbcast:%d %s" % (vW + w, vF, w, DPP))
    pkfma(vAcc, 11, vVt, None)
    e("s_mov_b32 s%d, %d" % (sCnt, SPIN))
    stamp(7)
    e("s_barrier")
    stamp(6)

    RB = lambda k: vP + 16 + 28 * k

    def polls(k):
        for s in range(1, 8):
            e("global_load_dwordx4 %s, v%d, %s offset:%d %s" % (R4(RB(k) + 4 * (s - 1)), vOa, S2(sWs), s * 1024 - 4096, POLLF))

    for w in range(4):
        e("ds_read_b128 %s, v%d offset:%d" % (R4(vP + 4 * w), vO16, 1024 * w))
    polls(0)
    for w in range(4):
        e("s_waitcnt lgkmcnt(%d)" % (3 - w))
        pkfma(vAcc, w, vP + 4 * w, vAcc)
    for k in range(1, PIPE):
        polls(k)
    e("L_cpoll:")
    for k in range(PIPE):
        for s in range(1, 8):
            vm(7 * (PIPE - 1) + 7 - s)
            pkfma(vAc2, 3 + s, RB(k) + 4 * (s - 1), vAcc if s == 1 else vAc2)
        e("v_pk_add_f32 %s, %s, %s" % (R2(vT0), R2(vAc2), R2(vAc2 + 2)))
        e("v_cvt_pk_bf16_f32 v%d, v%d, v%d" % (vM, vAc2, vAc2 + 1))
        e("v_cmp_u_f32 vcc, v%d, v%d" % (vT0, vT1))
        e("v_cvt_pk_bf16_f32 v%d, v%d, v%d" % (vM + 1, vAc2 + 2, vAc2 + 3))
        if k < PIPE - 1:
            e("s_cbranch_vccz L_cout")
            polls(k)
        else:
            e("s_cbranch_vccnz L_cretry")
    e("L_cout:")
    stamp(8)
    e("global_store_dwordx2 v%d, %s, %s %s" % (vOut, R2(vM), S2(sOut), OUTF))
    stamp(9)
    e("s_branch L_fin" if STAMP else "s_endpgm")
    e("L_cretry:")
    e("s_sub_u32 s%d, s%d, 1" % (sCnt, sCnt))
    e("s_cbranch_scc1 L_cout")
    e("s_and_b32 s3, s%d, 31" % sCnt)
    e("s_cbranch_scc1 L_cagain")
    b = RB(PIPE - 1)
    e("v_max3_u32 v%d, v%d, v%d, v%d" % (vT0, b, b + 1, b + 2))
    for k in range(3, 27, 2):
        e("v_max3_u32 v%d, v%d, v%d, v%d" % (vT0, vT0, b + k, b + k + 1))
    e("v_max_u32 v%d, v%d, v%d" % (vT0, vT0, b + 27))
    e("v_cmp_eq_u32 vcc, -1, v%d" % vT0)
    e("s_cbranch_vccz L_cout")
    e("L_cagain:")
    polls(PIPE - 1)
    e("s_branch L_cpoll")
    nv = max(nv, RB(PIPE))

    if STAMP:
        e("L_fin:")
        e("s_waitcnt vmcnt(0) lgkmcnt(0)")
        e("s_memrealtime s[60:61]")
        e("s_getreg_b32 s62, hwreg(HW_REG_XCC_ID)")
        e("s_mov_b32 s63, s%d" % sCnt)
        e("s_waitcnt lgkmcnt(0)")
        if LITE:
            e("s_cmp_eq_u32 s%d, 4" % sWave)
            e("s_cselect_b64 s[50:51], 0, s[60:61]")
        if PAD:
            e("s_mov_b32 s39, %d" % PAD)
            if CH >= 0:
                e("s_sub_u32 s3, s%d, s%d" % (40 + 2 * CH, 40 + 2 * CH0))
                e("s_cmp_eq_u32 s%d, 0" % (40 + 2 * CH))
                e("s_cselect_b32 s3, 0, s3")
                e("s_cmp_eq_u32 s%d, 0" % (40 + 2 * CH0))
                e("s_cselect_b32 s3, 0, s3")
                if CHW:
                    e("s_cmp_eq_u32 s%d, 4" % sWave)
                    e("s_cselect_b32 s3, 0, s3" if CHW == "main" else "s_cselect_b32 s3, s3, 0")
                e("s_min_u32 s3, s3, %d" % (12000 >> CHS))
                e("s_lshl_b32 s3, s3, %d" % CHS)
                e("s_add_u32 s39, s39, s3")
            e("L_pad:")
            e("s_sleep 2")
            e("s_memrealtime s[60:61]")
            e("s_waitcnt lgkmcnt(0)")
            e("s_sub_u32 s3, s60, s40")
            e("s_cmp_lt_u32 s3, s39")
            e("s_cbranch_scc1 L_pad")
            e("s_endpgm")
        e("s_mul_i32 s3, s2, 5")
        e("s_add_u32 s3, s3, s%d" % sWave)
        e("s_lshl_b32 s3, s3, 7")
        e("s_add_u32 s3, s3, %d" % WS_STAMP)
        e("s_mov_b64 exec, 1")
        e("v_mov_b32 v1, s3")
        for k in range(0, 12, 2):
            for q in range(4):
                e("v_mov_b32 v%d, s%d" % (4 + q, 40 + 2 * k + q))
            e("global_store_dwordx4 v1, v[4:7], %s offset:%d" % (S2(sWs), 8 * k))
            e("s_nop 1")
    e("L_end:")
    e("s_endpgm")
    tot = max(nv, NVGPR)
    e('.section .rodata,"a"')
    e(".p2align 6")
    e(".amdhsa_kernel %s" % KNAME)
    e("  .amdhsa_next_free_vgpr %d" % tot)
    e("  .amdhsa_next_free_sgpr %d" % (64 if STAMP else 32))
    e("  .amdhsa_accum_offset %d" % ((tot + 3) // 4 * 4))
    e("  .amdhsa_group_segment_fixed_size 0")
    e("  .amdhsa_kernarg_size 72")
    e("  .amdhsa_user_sgpr_count 2")
    e("  .amdhsa_user_sgpr_kernarg_segment_ptr 1")
    e("  .amdhsa_system_sgpr_workgroup_id_x 1")
    e("  .amdhsa_float_denorm_mode_32 3")
    e(".end_amdhsa_kernel")
    return "\n".join(("    " + l if not (l.startswith((";", ".", " ")) or l.endswith(":")) else l) for l in o) + "\n"


if __name__ == "__main__":
    kw = {}
    for a in sys.argv[2:]:
        k, v = a.split("=", 1)
        kw[k] = int(v) if v.lstrip("-").isdigit() else (v == "True" if v in ("True", "False") else v)
    open(sys.argv[1], "w").write(gen(**kw))
```

```python
import math, struct, sys

KNAME = "standalone__tree_speculative_verify_tree_attention_over_candidate_token_tree__decode_kernel"
HDR = open("standalone__tree_speculative_verify_tree_attention_over_candidate_token_tree__decode.s.ref").read().split("; Override launch")[0]
DPP = "row_mask:0xf bank_mask:0xf"

DOC = """;
"""


def f32(x):
    return "0x%08x" % struct.unpack("<I", struct.pack("<f", x))[0]


def gen(R=16, B0=7, EXPR=7, ASTEP=0, PIPE=2, FAST=True, SPIN=1 << 22, SLP=8, NVGPR=0, NT="nt",
        STAMP=False, LITE=True, PAD=0, CH=-1, CH0=0, CHS=3, ALIGN=0):
    NL = 32
    o = []
    e = o.append
    c = lambda t: o.append("    ; " + t)
    R4 = lambda b: "v[%d:%d]" % (b, b + 3)
    R2 = lambda b: "v[%d:%d]" % (b, b + 1)
    S2 = lambda b: "s[%d:%d]" % (b, b + 1)
    vL, vT0, vT1, vT2, vT3 = 1, 2, 3, 4, 5
    vKb, vVb, vA = 6, 7, 8
    vM, vSum = 10, 11
    vMask, vAcc, vQ, vPd = 12, 16, 20, 24
    vS = 32
    vT = vS + NL
    vR = vT + 32
    nv = vR + 4 * R
    slot = lambda i: vR + 4 * (i % R)
    sQ, sK, sV, sKt, sVt, sMk, sOut, sDbg, sWs = 4, 6, 8, 10, 12, 14, 16, 18, 20
    sBH, sSplit, sWave, sBase, sC, sXcc, sCnt, sMaskV = 22, 23, 24, 25, 26, 28, 29, 31
    LDS_ML = 4096
    WS_ML = 32 * 8192
    WS_STAMP = 1 << 20
    CEXP = 128 ** -0.5 * math.log2(math.e)
    END = "s_branch L_fin" if STAMP else "s_endpgm"

    def stamp(k):
        if STAMP and (k == 0 or not LITE):
            e("s_memrealtime s[%d:%d]" % (40 + 2 * k, 41 + 2 * k))

    def vm(n):
        e("s_waitcnt vmcnt(%d)" % n)

    def setexec(lo, hi=None):
        hi = lo if hi is None else hi
        if lo == hi == 0xffffffff:
            e("s_mov_b64 exec, -1")
        elif hi == 0:
            e("s_mov_b64 exec, 0x%x" % lo)
        else:
            e("s_mov_b32 exec_lo, 0x%x" % lo)
            e("s_mov_b32 exec_hi, 0x%x" % hi)

    e(HDR.rstrip())
    e("; @launch grid=(256,1,1) block=(320,1,1) lds=%d" % (LDS_ML + 64))
    e(DOC.rstrip())
    e('.amdgcn_target "amdgcn-amd-amdhsa--gfx950"')
    e(".text")
    e(".globl %s" % KNAME)
    e(".p2align 8")
    e(".type %s,@function" % KNAME)
    e("%s:" % KNAME)
    if STAMP:
        for k in range(42, 60, 2):
            e("s_mov_b64 s[%d:%d], 0" % (k, k + 1))
    stamp(0)
    e("s_load_dwordx8 s[4:11], s[0:1], 0")
    if STAMP:
        e("s_load_dwordx2 %s, s[0:1], 64" % S2(sWs))
    e("s_cmp_ge_u32 s2, 256")
    e("s_cbranch_scc1 L_end")
    e("v_lshrrev_b32 v%d, 6, v0" % vT0)
    e("v_and_b32 v%d, 63, v0" % vL)
    e("v_readfirstlane_b32 s%d, v%d           ; wave" % (sWave, vT0))
    e("s_and_b32 s%d, s2, 31                  ; group" % sBH)
    e("s_lshr_b32 s%d, s2, 5                  ; split" % sSplit)
    e("s_mov_b32 s%d, %s          ; log2(e)/sqrt(128)" % (sC, f32(CEXP)))
    e("s_cmp_eq_u32 s%d, 4" % sWave)
    e("s_cbranch_scc1 L_helper")
    c("byte offset bits: 10-11,15-16,19 = load index, 12-13 = wave ^ (split>>1), 14,17-18 = split, 20-24 = group")
    e("s_lshr_b32 s3, s%d, 1" % sSplit)
    e("s_xor_b32 s%d, s%d, s3" % (sBase, sWave))
    e("s_lshl_b32 s%d, s%d, 12" % (sBase, sBase))
    e("s_lshl_b32 s3, s3, 17")
    e("s_or_b32 s%d, s%d, s3" % (sBase, sBase))
    e("s_and_b32 s3, s%d, 1" % sSplit)
    e("s_lshl_b32 s3, s3, 14")
    e("s_or_b32 s%d, s%d, s3" % (sBase, sBase))
    e("s_lshl_b32 s3, s%d, 20" % sBH)
    e("s_or_b32 s%d, s%d, s3" % (sBase, sBase))
    D = lambda j: (((j >> 2) & 3) << 15) | (((j >> 4) & 1) << 19)
    c("V lane l reads bytes 16*l; K lane (g=l>>4, key=(l>>2)&3, col=l&3) reads key*256 + g*64 + col*16")
    e("v_lshl_add_u32 v%d, v%d, 4, s%d" % (vVb, vL, sBase))
    e("v_bfe_u32 v%d, v0, 4, 2" % vT1)
    e("v_and_b32 v%d, 3, v0" % vT2)
    e("v_bfe_u32 v%d, v0, 2, 2" % vT3)
    e("v_lshlrev_b32 v%d, 6, v%d" % (vT1, vT1))
    e("v_lshl_add_u32 v%d, v%d, 4, v%d" % (vT1, vT2, vT1))
    e("v_lshl_add_u32 v%d, v%d, 8, s%d" % (vKb, vT3, sBase))
    e("v_add_u32 v%d, v%d, v%d" % (vKb, vKb, vT1))
    c("q lane reads head (l>>3)&1, bytes g*64 + col*16")
    e("v_bfe_u32 v%d, v0, 3, 1" % vT3)
    e("s_lshl_b32 s3, s%d, 9" % sBH)
    e("v_lshl_add_u32 v%d, v%d, 8, v%d" % (vT1, vT3, vT1))
    e("v_add_u32 v%d, s3, v%d" % (vT1, vT1))
    e("s_waitcnt lgkmcnt(0)")
    stamp(1)

    def issue(i):
        kv, j = divmod(i, NL)
        base = vVb if kv else vKb
        addr = base
        if j >= 4:
            addr = vA
            if j % 4 == 0:
                e("v_add_u32 v%d, 0x%x, v%d" % (vA, D(j), base))
        e("global_load_dwordx4 %s, v%d, %s offset:%d %s" % (R4(slot(i)), addr, S2(sV if kv else sK), (j % 4) * 1024, NT))
        if i == B0:
            e("s_barrier")

    for i in range(R):
        issue(i)
        if i == 0:
            e("global_load_dwordx4 %s, v%d, %s" % (R4(vQ), vT1, S2(sQ)))
    c("diagonal masks: element e = l&7 lives in register e>>1, half e&1")
    e("v_and_b32 v%d, 1, v0" % vT0)
    e("v_lshlrev_b32 v%d, 4, v%d" % (vT0, vT0))
    e("v_mov_b32 v%d, 0xffff" % vT1)
    e("v_lshlrev_b32 v%d, v%d, v%d" % (vT0, vT0, vT1))
    e("v_bfe_u32 v%d, v0, 1, 2" % vT1)
    for r in range(4):
        e("v_cmp_eq_u32 vcc, %d, v%d" % (r, vT1))
        e("s_nop 1")
        e("v_cndmask_b32 v%d, 0, v%d, vcc" % (vMask + r, vT0))
    c("LDS addresses: (max,sum) at 4096 + head*32 + wave*8, O at tid*16")
    e("v_lshlrev_b32 v%d, 5, v%d" % (vT2, vT3))
    e("s_lshl_b32 s3, s%d, 3" % sWave)
    e("v_add_u32 v%d, s3, v%d" % (vT2, vT2))
    e("v_lshlrev_b32 v%d, 4, v0" % vT3)
    e("s_mov_b32 s%d, s%d" % (sC + 1, sC))

    T = lambda g, r: vT + 16 * (g % 2) + 4 * r

    def dppround(g, cc):
        for r in range(4):
            d, s = vS + 4 * g + r, T(g, r)
            if cc == 0:
                e("v_mov_b32_dpp v%d, v%d quad_perm:[0,0,0,0] %s" % (d, s, DPP))
            else:
                e("v_add_f32_dpp v%d, v%d, v%d quad_perm:[%d,%d,%d,%d] %s" % (d, s + cc, d, cc, cc, cc, cc, DPP))

    def maxg(g):
        b = vS + 4 * g
        e("v_pk_mul_f32 %s, %s, %s" % (R2(b), R2(b), S2(sC)))
        e("v_pk_mul_f32 %s, %s, %s" % (R2(b + 2), R2(b + 2), S2(sC)))
        if g == 0:
            e("v_max3_f32 v%d, v%d, v%d, v%d" % (vM, b, b + 1, b + 2))
            e("v_max_f32 v%d, v%d, v%d" % (vM, vM, b + 3))
        else:
            e("v_max3_f32 v%d, v%d, v%d, v%d" % (vM, vM, b, b + 1))
            e("v_max3_f32 v%d, v%d, v%d, v%d" % (vM, vM, b + 2, b + 3))

    c("---- scores")
    for g in range(8):
        for r in range(4):
            i = 4 * g + r
            vm(R - 1)
            e("v_mfma_f32_16x16x32_bf16 %s, %s, %s, 0" % (R4(T(g, r)), R4(slot(i)), R4(vQ)))
            issue(i + R)
            if g == 0 and r == 3:
                e("s_nop 3")
            if g > 0:
                dppround(g - 1, r)
        if g > 0:
            maxg(g - 1)
    stamp(3)
    for cc in range(4):
        dppround(7, cc)
    maxg(7)

    def xg(reg, op):
        for sw in ("v_permlane32_swap_b32", "v_permlane16_swap_b32"):
            e("v_mov_b32 v%d, v%d" % (vT0, reg))
            e("s_nop 1")
            e("%s v%d, v%d" % (sw, reg, vT0))
            e("s_nop 0")
            e("%s v%d, v%d, v%d" % (op, reg, reg, vT0))

    c("---- softmax numerators against the wave's true max, then P*V")
    xg(vM, "v_max_f32")

    def expg(g):
        b = vS + 4 * g
        for r in (0, 2):
            e("v_pk_add_f32 %s, %s, %s op_sel_hi:[1,0] neg_lo:[0,1] neg_hi:[0,1]" % (R2(b + r), R2(b + r), R2(vM)))
        for r in range(4):
            e("v_exp_f32 v%d, v%d" % (b + r, b + r))
        if g == 0:
            e("v_add_f32 v%d, v%d, v%d" % (vSum, b, b + 1))
        else:
            e("v_add_f32 v%d, v%d, v%d" % (vSum, vSum, b))
            e("v_add_f32 v%d, v%d, v%d" % (vSum, vSum, b + 1))
        e("v_add_f32 v%d, v%d, v%d" % (vSum, vSum, b + 2))
        e("v_add_f32 v%d, v%d, v%d" % (vSum, vSum, b + 3))
        for r in range(4):
            e("v_cvt_pk_bf16_f32 v%d, v%d, v%d" % (b + r, b + r, b + r))

    Pd = lambda i: (vT + 4 * (i - 24)) if i >= 24 else (vPd + 4 * (i % 2))

    def mkpd(i):
        for r in range(4):
            e("v_and_b32 v%d, v%d, v%d" % (Pd(i) + r, vMask + r, vS + i))

    assert ASTEP >= 6 // EXPR
    expg(0)
    mkpd(0)
    for i in range(NL):
        for gg in range(1 + i * EXPR, min(8, 1 + (i + 1) * EXPR)):
            expg(gg)
        if i + 1 < 24:
            mkpd(i + 1)
        if 8 <= i < 16:
            mkpd(i + 16)
        if i == min(ASTEP, 6 // EXPR + 1):
            xg(vSum, "v_add_f32")
            setexec(0x101, 0)
            e("ds_write_b64 v%d, %s offset:%d" % (vT2, R2(vM), LDS_ML))
            setexec(0xffffffff)
        if i == ASTEP:
            e("s_waitcnt lgkmcnt(0)")
            e("s_barrier")
        vm(min(R - 1, NL - 1 - i))
        e("v_mfma_f32_16x16x32_bf16 %s, %s, %s, %s" % (R4(vAcc), R4(Pd(i)), R4(slot(NL + i)), R4(vAcc) if i else "0"))
        if NL + i + R < 2 * NL:
            issue(NL + i + R)
    stamp(5)
    e("s_nop 7")
    e("ds_write_b128 v%d, %s" % (vT3, R4(vAcc)))
    e("s_waitcnt lgkmcnt(0)")
    e("s_barrier")
    e(END)

    vH, vO16, vOa, vMLa, vOut = 6, 7, 8, 9, 12
    vF, vMx = 13, 14
    vVt, vW, vAc2, vP = 20, 24, 36, 40
    e("")
    c("================ helper wave: lane l holds head l>>5, elements (l&15)*8 + ((l>>4)&1)*4 + 0..3")
    e("L_helper:")
    e("s_setprio 3")
    e("s_load_dwordx8 s[12:19], s[0:1], 32")
    e("s_load_dwordx2 %s, s[0:1], 64    ; ws" % S2(sWs))
    e("s_getreg_b32 s%d, hwreg(HW_REG_XCC_ID, 0, 4)" % sXcc)
    e("s_or_b32 s%d, s%d, 0x100" % (sXcc, sXcc))
    e("v_lshrrev_b32 v%d, 5, v%d" % (vH, vL))
    e("v_lshlrev_b32 v%d, 4, v%d" % (vO16, vL))
    e("v_and_b32 v%d, 15, v0" % vT0)
    c("O slots: ws + g*8192 + split*1024 (address kept biased by +4096)")
    e("s_lshl_b32 s3, s%d, 13" % sBH)
    e("s_add_u32 s3, s3, 4096")
    e("v_add_u32 v%d, s3, v%d" % (vOa, vO16))
    c("(max,sum): ws + 256 KiB + g*256 + head*64 + split*8; +128 for the device-scope copy")
    e("s_lshl_b32 s3, s%d, 8" % sBH)
    e("s_add_u32 s3, s3, %d" % WS_ML)
    e("v_lshl_add_u32 v%d, v%d, 6, s3" % (vMLa, vH))
    e("v_and_b32 v%d, 3, v0" % vT2)
    e("v_lshlrev_b32 v%d, 3, v%d" % (vT2, vT2))
    e("v_lshl_add_u32 v%d, v%d, 5, v%d" % (vT2, vH, vT2))
    e("s_lshl_b32 s30, s%d, 2" % sBH)
    e("v_mov_b32 v%d, s30" % vT3)
    for r in range(4):
        e("v_mov_b32 v%d, -1" % (vAcc + r))
    e("s_cmp_eq_u32 s%d, 0" % sSplit)
    e("s_waitcnt lgkmcnt(0)")
    if B0 >= 0:
        e("s_barrier")
    e("s_cbranch_scc1 L_cons")

    STEPS = ["quad_perm:[1,0,3,2]", "quad_perm:[2,3,0,1]", "row_half_mirror", "row_mirror"]

    def weights(nsteps):
        for k, st in enumerate(STEPS[:nsteps]):
            src = vM if k == 0 else vMx
            e("s_nop 1")
            e("v_max_f32_dpp v%d, v%d, v%d %s %s" % (vMx, src, src, st, DPP))
        e("v_sub_f32 v%d, v%d, v%d" % (vF, vM, vMx))
        e("v_exp_f32 v%d, v%d" % (vF, vF))
        e("s_nop 0")
        e("v_mul_f32 v%d, v%d, v%d" % (vSum, vF, vSum))
        for st in STEPS[:nsteps]:
            e("s_nop 1")
            e("v_add_f32_dpp v%d, v%d, v%d %s %s" % (vSum, vSum, vSum, st, DPP))

    def pkfma(dst, w, src, cin):
        wb, sel = vW + (w & ~1), w & 1
        for hh in (0, 2):
            if cin is None:
                e("v_pk_mul_f32 %s, %s, %s op_sel:[%d,0] op_sel_hi:[%d,1]" % (R2(dst + hh), R2(wb), R2(src + hh), sel, sel))
            else:
                e("v_pk_fma_f32 %s, %s, %s, %s op_sel:[%d,0,0] op_sel_hi:[%d,1,1]" % (R2(dst + hh), R2(wb), R2(src + hh), R2(cin + hh), sel, sel))

    def align():
        if ALIGN:
            e(".p2align %d" % ALIGN)

    c("---- producer: clear the own O slot and make its lines resident in this XCD's L2")
    e("s_lshl_b32 s3, s%d, 10" % sSplit)
    e("v_add_u32 v%d, s3, v%d" % (vOa, vOa))
    e("s_lshl_b32 s3, s%d, 3" % sSplit)
    e("v_add_u32 v%d, s3, v%d" % (vMLa, vMLa))
    e("global_store_dwordx4 v%d, %s, %s offset:-4096" % (vOa, R4(vAcc), S2(sWs)))
    setexec(0x01010101)
    e("global_load_dword v%d, v%d, %s offset:-4096 sc1" % (vP, vOa, S2(sWs)))
    setexec(0xffffffff)
    vm(0)
    e("s_barrier")
    stamp(4)
    e("ds_read_b64 %s, v%d offset:%d" % (R2(vM), vT2, LDS_ML))
    e("s_load_dword s3, %s, s30" % S2(sDbg))
    e("s_waitcnt lgkmcnt(0)")
    weights(2)
    e("v_mov_b32 v%d, v%d" % (vMx + 1, vSum))
    if not FAST:
        e("s_mov_b32 s3, 0")
    e("s_cmp_eq_u32 s3, s%d" % sXcc)
    e("s_cbranch_scc1 L_pmlfast")
    c("consumer not seen on this XCD: device-scope path")
    e("global_store_dwordx4 v%d, %s, %s offset:-4096 sc1" % (vOa, R4(vAcc), S2(sWs)))
    setexec(1, 1)
    e("global_store_dwordx2 v%d, %s, %s offset:128 sc1" % (vMLa, R2(vMx), S2(sWs)))
    e("s_lshl_b32 s30, 1, s%d" % sSplit)
    e("v_mov_b32 v%d, s30" % vT0)
    setexec(1, 0)
    vm(0)
    e("global_atomic_or v%d, v%d, %s offset:128" % (vT3, vT0, S2(sDbg)))
    e("s_branch L_pmldone")
    e("L_pmlfast:")
    setexec(1, 1)
    e("global_store_dwordx2 v%d, %s, %s" % (vMLa, R2(vMx), S2(sWs)))
    e("L_pmldone:")
    setexec(0xffffffff)
    for w in range(4):
        e("v_mov_b32_dpp v%d, v%d row_newbcast:%d %s" % (vW + w, vF, w, DPP))
    e("s_cmp_lg_u32 s3, s%d" % sXcc)
    stamp(7)
    align()
    e("s_barrier")
    stamp(6)
    for w in range(4):
        e("ds_read_b128 %s, v%d offset:%d" % (R4(vP + 4 * w), vO16, 1024 * w))
    for w in range(4):
        e("s_waitcnt lgkmcnt(%d)" % (3 - w))
        pkfma(vAcc, w, vP + 4 * w, vAcc if w else None)
    e("s_cbranch_scc1 L_pslow")
    e("global_store_dwordx4 v%d, %s, %s offset:-4096" % (vOa, R4(vAcc), S2(sWs)))
    stamp(9)
    e(END)
    e("L_pslow:")
    e("global_store_dwordx4 v%d, %s, %s offset:-4096 sc1" % (vOa, R4(vAcc), S2(sWs)))
    stamp(9)
    e(END)

    e("")
    c("---- consumer: clear the (max,sum) line, publish the XCC id, score the tree key")
    e("L_cons:")
    e("s_load_dword s%d, %s, 0" % (sMaskV, S2(sMk)))
    e("v_lshl_add_u32 v%d, v%d, 3, v%d" % (vT1, vT0, vMLa))
    setexec(0xff, 0xff)
    e("global_store_dwordx2 v%d, %s, %s" % (vT1, R2(vAcc), S2(sWs)))
    e("global_load_dwordx2 %s, v%d, %s sc1" % (R2(vP + 6), vT1, S2(sWs)))
    setexec(0xffffffff)
    c("row lane i: 0-3 own waves, 4-10 splits 1-7, 11 tree key, 12-15 empty")
    e("v_add_u32 v%d, -24, v%d" % (vMLa, vT1))
    e("v_bfe_u32 v%d, v0, 4, 1" % vT1)
    e("v_lshlrev_b32 v%d, 3, v%d" % (vT1, vT1))
    e("v_lshl_add_u32 v%d, v%d, 4, v%d" % (vT1, vT0, vT1))
    e("s_lshl_b32 s3, s%d, 8" % sBH)
    e("v_add_u32 v%d, s3, v%d" % (vT1, vT1))
    e("v_lshl_add_u32 v%d, v%d, 8, v%d" % (vOut, vH, vT1))
    e("v_add_u32 v%d, s3, v%d" % (vOut, vOut))
    e("global_load_dwordx2 %s, v%d, %s" % (R2(vP), vOut, S2(sQ)))
    e("global_load_dwordx2 %s, v%d, %s" % (R2(vP + 2), vT1, S2(sKt)))
    e("global_load_dwordx2 %s, v%d, %s" % (R2(vP + 4), vT1, S2(sVt)))
    e("v_add_u32 v%d, -3, v%d" % (vMx + 1, vT0))
    e("v_lshlrev_b32 v%d, v%d, 1" % (vMx + 1, vMx + 1))
    e("v_mov_b32 v%d, s%d" % (vT0, sXcc))
    e("v_mov_b32 v%d, 0xff800000" % vM)
    e("v_mov_b32 v%d, 0" % vSum)
    e("s_mov_b32 s%d, %d" % (sCnt, SPIN))
    e("s_waitcnt vmcnt(0) lgkmcnt(0)")
    setexec(1, 0)
    e("global_store_dword v%d, v%d, %s" % (vT3, vT0, S2(sDbg)))
    setexec(0xffffffff)
    for k in range(2):
        e("v_lshlrev_b32 v%d, 16, v%d" % (vP + 8 + 2 * k, vP + k))
        e("v_and_b32 v%d, 0xffff0000, v%d" % (vP + 9 + 2 * k, vP + k))
        e("v_lshlrev_b32 v%d, 16, v%d" % (vP + 12 + 2 * k, vP + 2 + k))
        e("v_and_b32 v%d, 0xffff0000, v%d" % (vP + 13 + 2 * k, vP + 2 + k))
        e("v_lshlrev_b32 v%d, 16, v%d" % (vVt + 2 * k, vP + 4 + k))
        e("v_and_b32 v%d, 0xffff0000, v%d" % (vVt + 1 + 2 * k, vP + 4 + k))
    e("v_mul_f32 v%d, v%d, v%d" % (vF, vP + 8, vP + 12))
    for k in range(1, 4):
        e("v_fmac_f32 v%d, v%d, v%d" % (vF, vP + 8 + k, vP + 12 + k))
    for st in STEPS:
        e("s_nop 1")
        e("v_add_f32_dpp v%d, v%d, v%d %s %s" % (vF, vF, vF, st, DPP))
    e("v_mov_b32 v%d, v%d" % (vT0, vF))
    e("s_nop 1")
    e("v_permlane16_swap_b32 v%d, v%d" % (vF, vT0))
    e("s_nop 0")
    e("v_add_f32 v%d, v%d, v%d" % (vF, vF, vT0))
    c("score*scale + (1 - mask) * -1e9, in log2 units")
    e("s_and_b32 s3, s%d, 16" % sBH)
    e("s_lshr_b32 s%d, s%d, s3" % (sMaskV, sMaskV))
    e("s_lshl_b32 s%d, s%d, 16" % (sMaskV, sMaskV))
    e("v_mov_b32 v%d, %s" % (vT1, f32(-1e9 * 128 ** 0.5)))
    e("v_sub_f32 v%d, 1.0, s%d" % (vT0, sMaskV))
    e("v_fmac_f32 v%d, v%d, v%d" % (vF, vT0, vT1))
    setexec(0x08000800)
    e("v_mul_f32 v%d, s%d, v%d" % (vM, sC, vF))
    e("v_mov_b32 v%d, 1.0" % vSum)
    e("s_mov_b32 s30, 0")
    setexec(0x000f000f)
    e("s_barrier")
    stamp(4)
    e("ds_read_b64 %s, v%d offset:%d" % (R2(vM), vT2, LDS_ML))
    e("s_waitcnt lgkmcnt(0)")
    setexec(0x07f007f0)
    c("collect (max,sum) of the seven producers; s30 = splits announced on the device-scope path")
    e("L_cml:")
    e("global_load_dwordx2 %s, v%d, %s sc1" % (R2(vM), vMLa, S2(sWs)))
    e("global_load_dword v%d, v%d, %s offset:128 sc1" % (vP + 2, vT3, S2(sDbg)))
    e("s_cmp_eq_u32 s30, 0")
    e("s_cbranch_scc1 L_cml_a")
    e("global_load_dwordx2 %s, v%d, %s offset:128 sc1" % (R2(vP), vMLa, S2(sWs)))
    e("v_and_b32 v%d, s30, v%d" % (vT0, vMx + 1))
    e("v_cmp_ne_u32 vcc, 0, v%d" % vT0)
    vm(0)
    e("s_sleep %d                              ; keep the poll rate on the shared flag line low" % SLP if SLP else "s_nop 0")
    e("v_cndmask_b32 v%d, v%d, v%d, vcc" % (vM, vM, vP))
    e("v_cndmask_b32 v%d, v%d, v%d, vcc" % (vSum, vSum, vP + 1))
    e("L_cml_a:")
    e("s_sub_u32 s%d, s%d, 1" % (sCnt, sCnt))
    e("s_cbranch_scc1 L_cml_done")
    vm(0)
    e("v_readfirstlane_b32 s30, v%d" % (vP + 2))
    e("v_max_u32 v%d, v%d, v%d" % (vT0, vM, vSum))
    e("v_cmp_eq_u32 vcc, -1, v%d" % vT0)
    e("s_cbranch_vccnz L_cml")
    e("L_cml_done:")
    vm(0)
    setexec(0xffffffff)
    c("normalised weight of every partial: exp2(max_i - max) / sum")
    weights(4)
    e("v_rcp_f32 v%d, v%d" % (vSum, vSum))
    e("s_nop 0")
    e("v_mul_f32 v%d, v%d, v%d" % (vF, vF, vSum))
    e("s_nop 1")
    for w in range(12):
        e("v_mov_b32_dpp v%d, v%d row_newbcast:%d %s" % (vW + w, vF, w, DPP))
    pkfma(vAcc, 11, vVt, None)
    e("s_mov_b32 s%d, %d" % (sCnt, SPIN))
    stamp(7)
    align()
    e("s_barrier")
    stamp(6)
    RB = lambda k: vP + 16 + 28 * k

    def polls(k):
        for s in range(1, 8):
            e("global_load_dwordx4 %s, v%d, %s offset:%d sc1" % (R4(RB(k) + 4 * (s - 1)), vOa, S2(sWs), s * 1024 - 4096))

    for w in range(4):
        e("ds_read_b128 %s, v%d offset:%d" % (R4(vP + 4 * w), vO16, 1024 * w))
    polls(0)
    for w in range(4):
        e("s_waitcnt lgkmcnt(%d)" % (3 - w))
        pkfma(vAcc, w, vP + 4 * w, vAcc)
    for k in range(1, PIPE):
        polls(k)
    c("poll the seven O slots; a word that is still all-ones turns the sum into a NaN")
    e("L_cpoll:")
    for k in range(PIPE):
        for s in range(1, 8):
            vm(7 * (PIPE - 1) + 7 - s)
            pkfma(vAc2, 3 + s, RB(k) + 4 * (s - 1), vAcc if s == 1 else vAc2)
        e("v_pk_add_f32 %s, %s, %s" % (R2(vT0), R2(vAc2), R2(vAc2 + 2)))
        e("v_cvt_pk_bf16_f32 v%d, v%d, v%d" % (vM, vAc2, vAc2 + 1))
        e("v_cmp_u_f32 vcc, v%d, v%d" % (vT0, vT1))
        e("v_cvt_pk_bf16_f32 v%d, v%d, v%d" % (vM + 1, vAc2 + 2, vAc2 + 3))
        if k < PIPE - 1:
            e("s_cbranch_vccz L_cout")
            polls(k)
        else:
            e("s_cbranch_vccnz L_cretry")
    e("L_cout:")
    stamp(8)
    e("global_store_dwordx2 v%d, %s, %s" % (vOut, R2(vM), S2(sOut)))
    stamp(9)
    e(END)
    e("L_cretry:")
    e("s_sub_u32 s%d, s%d, 1" % (sCnt, sCnt))
    e("s_cbranch_scc1 L_cout")
    e("s_and_b32 s3, s%d, 15" % sCnt)
    e("s_cbranch_scc1 L_cagain")
    c("exact test now and then: the NaN may be a genuine result")
    b = RB(PIPE - 1)
    e("v_max3_u32 v%d, v%d, v%d, v%d" % (vT0, b, b + 1, b + 2))
    for k in range(3, 27, 2):
        e("v_max3_u32 v%d, v%d, v%d, v%d" % (vT0, vT0, b + k, b + k + 1))
    e("v_max_u32 v%d, v%d, v%d" % (vT0, vT0, b + 27))
    e("v_cmp_eq_u32 vcc, -1, v%d" % vT0)
    e("s_cbranch_vccz L_cout")
    e("L_cagain:")
    polls(PIPE - 1)
    e("s_branch L_cpoll")
    nv = max(nv, RB(PIPE))

    if STAMP:
        e("L_fin:")
        e("s_waitcnt vmcnt(0) lgkmcnt(0)")
        e("s_memrealtime s[60:61]")
        e("s_getreg_b32 s62, hwreg(HW_REG_XCC_ID)")
        e("s_mov_b32 s63, s%d" % sCnt)
        e("s_waitcnt lgkmcnt(0)")
        if LITE:
            e("s_cmp_eq_u32 s%d, 4" % sWave)
            e("s_cselect_b64 s[50:51], 0, s[60:61]")
        e("s_mul_i32 s3, s2, 5")
        e("s_add_u32 s3, s3, s%d" % sWave)
        e("s_lshl_b32 s3, s3, 7")
        e("s_add_u32 s3, s3, %d" % WS_STAMP)
        e("s_mov_b64 exec, 1")
        e("v_mov_b32 v1, s3")
        for k in range(0, 12, 2):
            for q in range(4):
                e("v_mov_b32 v%d, s%d" % (4 + q, 40 + 2 * k + q))
            e("global_store_dwordx4 v1, v[4:7], %s offset:%d" % (S2(sWs), 8 * k))
            e("s_nop 1")
    e("L_end:")
    e("s_endpgm")
    tot = max(nv, NVGPR)
    e('.section .rodata,"a"')
    e(".p2align 6")
    e(".amdhsa_kernel %s" % KNAME)
    e("  .amdhsa_next_free_vgpr %d" % tot)
    e("  .amdhsa_next_free_sgpr %d" % (64 if STAMP else 32))
    e("  .amdhsa_accum_offset %d" % ((tot + 3) // 4 * 4))
    e("  .amdhsa_group_segment_fixed_size 0")
    e("  .amdhsa_kernarg_size 72")
    e("  .amdhsa_user_sgpr_count 2")
    e("  .amdhsa_user_sgpr_kernarg_segment_ptr 1")
    e("  .amdhsa_system_sgpr_workgroup_id_x 1")
    e("  .amdhsa_float_denorm_mode_32 3")
    e(".end_amdhsa_kernel")
    return "\n".join(("    " + l if l and not (l.startswith((";", ".", " ")) or l.endswith(":")) else l).rstrip() for l in o) + "\n"


if __name__ == "__main__":
    kw = {}
    for a in sys.argv[2:]:
        k, v = a.split("=", 1)
        kw[k] = int(v) if v.lstrip("-").isdigit() else (v == "True" if v in ("True", "False") else v)
    open(sys.argv[1], "w").write(gen(**kw))
```

```python
import math, struct, sys

KNAME = "standalone__tree_speculative_verify_tree_attention_over_candidate_token_tree__decode_kernel"
HDR = open("standalone__tree_speculative_verify_tree_attention_over_candidate_token_tree__decode.s.ref").read().split("; Override launch")[0]
DPP = "row_mask:0xf bank_mask:0xf"

DOC = """;
"""


def f32(x):
    return "0x%08x" % struct.unpack("<I", struct.pack("<f", x))[0]


def gen(R=16, B0=7, EXPR=7, ASTEP=0, PIPE=2, FAST=True, SPIN=1 << 22, SLP=0, NVGPR=0, NT="nt",
        STAMP=False, LITE=True, PAD=0, CH=-1, CH0=0, CHS=3, ALIGN=0, M=None, MK=False, MINI=False, W=0, WLAST=64, DIAG="", WAITS="1234567", CH4=False, ENDB=True, POLL1ST=False, PW="0123"):
    NL = 32
    o = []
    e = o.append
    c = lambda t: o.append("    ; " + t)
    R4 = lambda b: "v[%d:%d]" % (b, b + 3)
    R2 = lambda b: "v[%d:%d]" % (b, b + 1)
    S2 = lambda b: "s[%d:%d]" % (b, b + 1)
    vL, vT0, vT1, vT2, vT3 = 1, 2, 3, 4, 5
    vKb, vVb, vA = 6, 7, 8
    vM, vSum = 10, 11
    vMask, vAcc, vQ, vPd = 12, 16, 20, 24
    vS = 32
    vT = vS + NL
    vR = vT + 32
    nv = vR + 4 * R
    slot = lambda i: vR + 4 * (i % R)
    sQ, sK, sV, sKt, sVt, sMk, sOut, sDbg, sWs = 4, 6, 8, 10, 12, 14, 16, 18, 20
    sBH, sSplit, sWave, sBase, sC, sXcc, sCnt, sMaskV = 22, 23, 24, 25, 26, 28, 29, 31
    LDS_ML = 4096
    WS_ML = 32 * 8192
    WS_STAMP = 1 << 20
    CEXP = 128 ** -0.5 * math.log2(math.e)
    END = "s_branch L_fin" if STAMP else "s_endpgm"
    HEND = "s_branch L_mini" if MINI else END

    def stamp(k):
        if STAMP and (k == 0 or not LITE):
            e("s_memrealtime s[%d:%d]" % (40 + 2 * k, 41 + 2 * k))

    def vm(n):
        e("s_waitcnt vmcnt(%d)" % n)

    def setexec(lo, hi=None):
        hi = lo if hi is None else hi
        if lo == hi == 0xffffffff:
            e("s_mov_b64 exec, -1")
        elif hi == 0:
            e("s_mov_b64 exec, 0x%x" % lo)
        else:
            e("s_mov_b32 exec_lo, 0x%x" % lo)
            e("s_mov_b32 exec_hi, 0x%x" % hi)

    e(HDR.rstrip())
    e("; @launch grid=(256,1,1) block=(320,1,1) lds=%d" % (LDS_ML + 64))
    e(DOC.rstrip())
    e('.amdgcn_target "amdgcn-amd-amdhsa--gfx950"')
    e(".text")
    e(".globl %s" % KNAME)
    e(".p2align 8")
    e(".type %s,@function" % KNAME)
    e("%s:" % KNAME)
    if STAMP:
        for k in range(42, 60, 2):
            e("s_mov_b64 s[%d:%d], 0" % (k, k + 1))
    stamp(0)
    if MINI:
        e("s_memrealtime s[40:41]")
        e("s_memtime s[44:45]")
    e("s_load_dwordx8 s[4:11], s[0:1], 0")
    if STAMP:
        e("s_load_dwordx2 %s, s[0:1], 64" % S2(sWs))
    e("s_cmp_ge_u32 s2, 256")
    e("s_cbranch_scc1 L_end")
    e("v_lshrrev_b32 v%d, 6, v0" % vT0)
    e("v_and_b32 v%d, 63, v0" % vL)
    e("v_readfirstlane_b32 s%d, v%d           ; wave" % (sWave, vT0))
    if isinstance(M, str):
        M = [int(x, 16) for x in M.split(",")]
    if M is None:
        M = [0x001, 0x002, 0x004, 0x008, 0x080, 0x100, 0x800, 0x010, 0x020, 0x040, 0x210, 0x420, 0, 0, 0, 0, 0]
    M = list(M)
    if not any(x >> 12 for x in M[12:]):
        M[12:] = [x | (0x1000 << i) for i, x in enumerate(M[12:])]
    P = [0] * 5
    for t in range(5):
        P[t] = (P[t - 1] if t else 0) ^ M[2 + t]
    mk = (lambda k: "s%d" % (64 + k)) if MK else (lambda k: "0x%x" % ((P[k - 2] if 2 <= k < 7 else M[k]) << 8))
    c("cache row (group*4096 + key) = XOR of one mask per set bit of (workgroup id, wave, load index,")
    c("row in load): a bijection chosen so that the streams stay spread over the HBM channels")
    if MK:
        e("s_load_dwordx16 s[64:79], s[0:1], 72")
        e("s_load_dword s80, s[0:1], 136")
        e("s_waitcnt lgkmcnt(0)")
        for k in range(17):
            e("s_and_b32 s%d, s%d, 0x%x" % (64 + k, 64 + k, 0xfff00 if k < 12 else 0x1ffff00))

    def xbit(reg, bit, k, first=False):
        e("s_bitcmp1_b32 s%d, %d" % (reg, bit))
        e("s_cselect_b32 s%d, %s, 0" % (sBase if first else 3, mk(k)))
        if not first:
            e("s_xor_b32 s%d, s%d, s3" % (sBase, sBase))

    for i in range(5):
        xbit(2, i, 12 + i, i == 0)
    e("s_lshr_b32 s%d, s%d, 20                ; group" % (sBH, sBase))
    e("s_cmp_eq_u32 s%d, 4" % sWave)
    e("s_cbranch_scc1 L_helper")
    for reg, bit, k in [(2, 5, 9), (2, 6, 10), (2, 7, 11), (sWave, 0, 7), (sWave, 1, 8)]:
        xbit(reg, bit, k)
    c("K lane (g=l>>4, row=(l>>2)&3, col=l&3) reads bytes g*64 + col*16 of its row")
    e("v_bfe_i32 v%d, v0, 2, 1" % vT0)
    e("v_bfe_i32 v%d, v0, 3, 1" % vT3)
    e("v_bfe_u32 v%d, v0, 4, 2" % vT1)
    e("v_and_b32 v%d, 3, v0" % vT2)
    e("v_and_b32 v%d, %s, v%d" % (vT0, mk(0), vT0))
    e("v_and_b32 v%d, %s, v%d" % (vA, mk(1), vT3))
    e("v_lshl_add_u32 v%d, v%d, 2, v%d" % (vT1, vT1, vT2))
    e("v_xor_b32 v%d, v%d, v%d" % (vA, vA, vT0))
    e("v_lshl_add_u32 v%d, v%d, 4, v%d" % (vA, vT1, vA))
    e("v_xor_b32 v%d, s%d, v%d" % (vA, sBase, vA))
    c("q lane reads head (l>>3)&1, bytes g*64 + col*16")
    e("s_lshl_b32 s3, s%d, 9" % sBH)
    e("v_and_b32 v%d, 1, v%d" % (vT3, vT3))
    e("v_lshl_add_u32 v%d, v%d, 4, s3" % (vT1, vT1))
    e("v_lshl_add_u32 v%d, v%d, 8, v%d" % (vT1, vT3, vT1))
    e("s_waitcnt lgkmcnt(0)")
    stamp(1)

    def issue(i):
        kv, j = divmod(i, NL)
        addr = vVb if kv else vA
        if j:
            e("v_xor_b32 v%d, %s, v%d" % (addr, mk(2 + (j & -j).bit_length() - 1), addr))
        if W and W <= i < WLAST:
            vm(W - 1)
        e("global_load_dwordx4 %s, v%d, %s %s" % (R4(slot(i)), addr, S2(sV if kv else sK), NT))
        if i == B0:
            e("s_barrier")

    for i in range(R):
        issue(i)
        if i == 0:
            e("global_load_dwordx4 %s, v%d, %s" % (R4(vQ), vT1, S2(sQ)))
    c("V lane (row=l>>4, col=l&15) reads bytes col*16 of its row")
    e("v_bfe_i32 v%d, v0, 4, 1" % vT0)
    e("v_bfe_i32 v%d, v0, 5, 1" % vT1)
    e("v_and_b32 v%d, 15, v0" % vT2)
    e("v_and_b32 v%d, %s, v%d" % (vT0, mk(0), vT0))
    e("v_and_b32 v%d, %s, v%d" % (vT1, mk(1), vT1))
    e("v_xor_b32 v%d, v%d, v%d" % (vT0, vT0, vT1))
    e("v_lshl_add_u32 v%d, v%d, 4, v%d" % (vT0, vT2, vT0))
    e("v_xor_b32 v%d, s%d, v%d" % (vVb, sBase, vT0))
    c("diagonal masks: element e = l&7 lives in register e>>1, half e&1")
    e("v_and_b32 v%d, 1, v0" % vT0)
    e("v_lshlrev_b32 v%d, 4, v%d" % (vT0, vT0))
    e("v_mov_b32 v%d, 0xffff" % vT1)
    e("v_lshlrev_b32 v%d, v%d, v%d" % (vT0, vT0, vT1))
    e("v_bfe_u32 v%d, v0, 1, 2" % vT1)
    for r in range(4):
        e("v_cmp_eq_u32 vcc, %d, v%d" % (r, vT1))
        e("s_nop 1")
        e("v_cndmask_b32 v%d, 0, v%d, vcc" % (vMask + r, vT0))
    c("LDS addresses: (max,sum) at 4096 + head*32 + wave*8, O at tid*16")
    e("v_lshlrev_b32 v%d, 5, v%d" % (vT2, vT3))
    e("s_lshl_b32 s3, s%d, 3" % sWave)
    e("v_add_u32 v%d, s3, v%d" % (vT2, vT2))
    e("v_lshlrev_b32 v%d, 4, v0" % vT3)
    e("s_mov_b32 s%d, %s          ; log2(e)/sqrt(128)" % (sC, f32(CEXP)))
    e("s_mov_b32 s%d, s%d" % (sC + 1, sC))

    T = lambda g, r: vT + 16 * (g % 2) + 4 * r

    def dppround(g, cc):
        for r in range(4):
            d, s = vS + 4 * g + r, T(g, r)
            if cc == 0:
                e("v_mov_b32_dpp v%d, v%d quad_perm:[0,0,0,0] %s" % (d, s, DPP))
            else:
                e("v_add_f32_dpp v%d, v%d, v%d quad_perm:[%d,%d,%d,%d] %s" % (d, s + cc, d, cc, cc, cc, cc, DPP))

    def maxg(g):
        b = vS + 4 * g
        e("v_pk_mul_f32 %s, %s, %s" % (R2(b), R2(b), S2(sC)))
        e("v_pk_mul_f32 %s, %s, %s" % (R2(b + 2), R2(b + 2), S2(sC)))
        if g == 0:
            e("v_max3_f32 v%d, v%d, v%d, v%d" % (vM, b, b + 1, b + 2))
            e("v_max_f32 v%d, v%d, v%d" % (vM, vM, b + 3))
        else:
            e("v_max3_f32 v%d, v%d, v%d, v%d" % (vM, vM, b, b + 1))
            e("v_max3_f32 v%d, v%d, v%d, v%d" % (vM, vM, b + 2, b + 3))

    c("---- scores")
    for g in range(8):
        for r in range(4):
            i = 4 * g + r
            vm(R - 1)
            e("v_mfma_f32_16x16x32_bf16 %s, %s, %s, 0" % (R4(T(g, r)), R4(slot(i)), R4(vQ)))
            issue(i + R)
            if g == 0 and r == 3:
                e("s_nop 3")
            if g > 0:
                dppround(g - 1, r)
        if g > 0:
            maxg(g - 1)
    stamp(3)
    for cc in range(4):
        dppround(7, cc)
    maxg(7)

    def xg(reg, op):
        for sw in ("v_permlane32_swap_b32", "v_permlane16_swap_b32"):
            e("v_mov_b32 v%d, v%d" % (vT0, reg))
            e("s_nop 1")
            e("%s v%d, v%d" % (sw, reg, vT0))
            e("s_nop 0")
            e("%s v%d, v%d, v%d" % (op, reg, reg, vT0))

    c("---- softmax numerators against the wave's true max, then P*V")
    xg(vM, "v_max_f32")

    def expg(g):
        b = vS + 4 * g
        for r in (0, 2):
            e("v_pk_add_f32 %s, %s, %s op_sel_hi:[1,0] neg_lo:[0,1] neg_hi:[0,1]" % (R2(b + r), R2(b + r), R2(vM)))
        for r in range(4):
            e("v_exp_f32 v%d, v%d" % (b + r, b + r))
        if g == 0:
            e("v_add_f32 v%d, v%d, v%d" % (vSum, b, b + 1))
        else:
            e("v_add_f32 v%d, v%d, v%d" % (vSum, vSum, b))
            e("v_add_f32 v%d, v%d, v%d" % (vSum, vSum, b + 1))
        e("v_add_f32 v%d, v%d, v%d" % (vSum, vSum, b + 2))
        e("v_add_f32 v%d, v%d, v%d" % (vSum, vSum, b + 3))
        for r in range(4):
            e("v_cvt_pk_bf16_f32 v%d, v%d, v%d" % (b + r, b + r, b + r))

    Pd = lambda i: (vT + 4 * (i - 24)) if i >= 24 else (vPd + 4 * (i % 2))

    def mkpd(i):
        for r in range(4):
            e("v_and_b32 v%d, v%d, v%d" % (Pd(i) + r, vMask + r, vS + i))

    assert ASTEP >= 6 // EXPR
    expg(0)
    mkpd(0)
    for i in range(NL):
        for gg in range(1 + i * EXPR, min(8, 1 + (i + 1) * EXPR)):
            expg(gg)
        if i + 1 < 24:
            mkpd(i + 1)
        if 8 <= i < 16:
            mkpd(i + 16)
        if i == min(ASTEP, 6 // EXPR + 1):
            xg(vSum, "v_add_f32")
            setexec(0x101, 0)
            e("ds_write_b64 v%d, %s offset:%d" % (vT2, R2(vM), LDS_ML))
            setexec(0xffffffff)
        if i == ASTEP:
            e("s_waitcnt lgkmcnt(0)")
            e("s_barrier")
        vm(min(R - 1, NL - 1 - i))
        e("v_mfma_f32_16x16x32_bf16 %s, %s, %s, %s" % (R4(vAcc), R4(Pd(i)), R4(slot(NL + i)), R4(vAcc) if i else "0"))
        if NL + i + R < 2 * NL:
            issue(NL + i + R)
    stamp(5)
    e("s_nop 7")
    e("ds_write_b128 v%d, %s" % (vT3, R4(vAcc)))
    e("s_waitcnt lgkmcnt(0)")
    if ENDB:
        e("s_barrier")
    e(END)

    vH, vO16, vOa, vMLa, vOut = 6, 7, 8, 9, 12
    vF, vMx = 13, 14
    vVt, vW, vAc2, vP = 20, 24, 36, 40
    e("")
    c("================ helper wave: lane l holds head l>>5, elements (l&15)*8 + ((l>>4)&1)*4 + 0..3")
    e("L_helper:")
    e("s_setprio 3")
    e("s_load_dwordx8 s[12:19], s[0:1], 32")
    e("s_load_dwordx2 %s, s[0:1], 64    ; ws" % S2(sWs))
    e("s_lshr_b32 s%d, s2, 5                  ; split" % sSplit)
    e("s_mov_b32 s%d, %s          ; log2(e)/sqrt(128)" % (sC, f32(CEXP)))
    e("s_getreg_b32 s%d, hwreg(HW_REG_XCC_ID, 0, 4)" % sXcc)
    e("s_or_b32 s%d, s%d, 0x100" % (sXcc, sXcc))
    e("v_lshrrev_b32 v%d, 5, v%d" % (vH, vL))
    e("v_lshlrev_b32 v%d, 4, v%d" % (vO16, vL))
    e("v_and_b32 v%d, 15, v0" % vT0)
    c("O slots: ws + g*8192 + split*1024 (address kept biased by +4096)")
    e("s_lshl_b32 s3, s%d, 13" % sBH)
    e("s_add_u32 s3, s3, 4096")
    e("v_add_u32 v%d, s3, v%d" % (vOa, vO16))
    c("(max,sum): ws + 256 KiB + g*256 + head*64 + split*8; +128 for the device-scope copy")
    e("s_lshl_b32 s3, s%d, 8" % sBH)
    e("s_add_u32 s3, s3, %d" % WS_ML)
    e("v_lshl_add_u32 v%d, v%d, 6, s3" % (vMLa, vH))
    e("v_and_b32 v%d, 3, v0" % vT2)
    e("v_lshlrev_b32 v%d, 3, v%d" % (vT2, vT2))
    e("v_lshl_add_u32 v%d, v%d, 5, v%d" % (vT2, vH, vT2))
    e("s_lshl_b32 s30, s%d, 2" % sBH)
    e("v_mov_b32 v%d, s30" % vT3)
    for r in range(4):
        e("v_mov_b32 v%d, -1" % (vAcc + r))
    e("s_cmp_eq_u32 s%d, 0" % sSplit)
    e("s_waitcnt lgkmcnt(0)")
    if B0 >= 0:
        e("s_barrier")
    if "H" in DIAG:
        e("s_barrier")
        e("s_barrier")
        e(HEND)
    e("s_cbranch_scc1 L_cons")

    STEPS = ["quad_perm:[1,0,3,2]", "quad_perm:[2,3,0,1]", "row_half_mirror", "row_mirror"]

    def weights(nsteps):
        for k, st in enumerate(STEPS[:nsteps]):
            src = vM if k == 0 else vMx
            e("s_nop 1")
            e("v_max_f32_dpp v%d, v%d, v%d %s %s" % (vMx, src, src, st, DPP))
        e("v_sub_f32 v%d, v%d, v%d" % (vF, vM, vMx))
        e("v_exp_f32 v%d, v%d" % (vF, vF))
        e("s_nop 0")
        e("v_mul_f32 v%d, v%d, v%d" % (vSum, vF, vSum))
        for st in STEPS[:nsteps]:
            e("s_nop 1")
            e("v_add_f32_dpp v%d, v%d, v%d %s %s" % (vSum, vSum, vSum, st, DPP))

    def pkfma(dst, w, src, cin):
        wb, sel = vW + (w & ~1), w & 1
        for hh in (0, 2):
            if cin is None:
                e("v_pk_mul_f32 %s, %s, %s op_sel:[%d,0] op_sel_hi:[%d,1]" % (R2(dst + hh), R2(wb), R2(src + hh), sel, sel))
            else:
                e("v_pk_fma_f32 %s, %s, %s, %s op_sel:[%d,0,0] op_sel_hi:[%d,1,1]" % (R2(dst + hh), R2(wb), R2(src + hh), R2(cin + hh), sel, sel))

    def align():
        if ALIGN:
            e(".p2align %d" % ALIGN)

    c("---- producer: clear the own O slot and make its lines resident in this XCD's L2")
    e("s_lshl_b32 s3, s%d, 10" % sSplit)
    e("v_add_u32 v%d, s3, v%d" % (vOa, vOa))
    e("s_lshl_b32 s3, s%d, 3" % sSplit)
    e("v_add_u32 v%d, s3, v%d" % (vMLa, vMLa))
    def clear():
        if "r" in DIAG:
            setexec(0x01010101)
            e("global_load_dword v%d, v%d, %s offset:-4096 sc1" % (vP, vOa, S2(sWs)))
            setexec(0xffffffff)
            vm(0)
            e("global_store_dwordx4 v%d, %s, %s offset:-4096" % (vOa, R4(vAcc), S2(sWs)))
            return
        if "z" not in DIAG and "w" not in DIAG:
            e("global_store_dwordx4 v%d, %s, %s offset:-4096" % (vOa, R4(vAcc), S2(sWs)))
        setexec(0x01010101)
        if "w" in DIAG:
            e("global_store_dword v%d, v%d, %s offset:-4096" % (vOa, vAcc, S2(sWs)))
        if "n" not in DIAG:
            e("global_load_dword v%d, v%d, %s offset:-4096 sc1" % (vP, vOa, S2(sWs)))
        setexec(0xffffffff)
    if "x" not in DIAG:
        clear()
    vm(0)
    e("s_barrier")
    if "x" in DIAG:
        clear()
        vm(0)
    stamp(4)
    e("ds_read_b64 %s, v%d offset:%d" % (R2(vM), vT2, LDS_ML))
    e("s_load_dword s3, %s, s30" % S2(sDbg))
    e("s_waitcnt lgkmcnt(0)")
    weights(2)
    e("v_mov_b32 v%d, v%d" % (vMx + 1, vSum))
    if not FAST:
        e("s_mov_b32 s3, 0")
    e("s_cmp_eq_u32 s3, s%d" % sXcc)
    e("s_cbranch_scc1 L_pmlfast")
    c("consumer not seen on this XCD: device-scope path")
    e("global_store_dwordx4 v%d, %s, %s offset:-4096 sc1" % (vOa, R4(vAcc), S2(sWs)))
    setexec(1, 1)
    e("global_store_dwordx2 v%d, %s, %s offset:128 sc1" % (vMLa, R2(vMx), S2(sWs)))
    e("s_lshl_b32 s30, 1, s%d" % sSplit)
    e("v_mov_b32 v%d, s30" % vT0)
    setexec(1, 0)
    vm(0)
    e("global_atomic_or v%d, v%d, %s offset:128" % (vT3, vT0, S2(sDbg)))
    e("s_branch L_pmldone")
    e("L_pmlfast:")
    setexec(1, 1)
    e("global_store_dwordx2 v%d, %s, %s" % (vMLa, R2(vMx), S2(sWs)))
    e("L_pmldone:")
    setexec(0xffffffff)
    for w in range(4):
        e("v_mov_b32_dpp v%d, v%d row_newbcast:%d %s" % (vW + w, vF, w, DPP))
    e("s_cmp_lg_u32 s3, s%d" % sXcc)
    stamp(7)
    align()
    e("s_barrier")
    stamp(6)
    for w in range(4):
        e("ds_read_b128 %s, v%d offset:%d" % (R4(vP + 4 * w), vO16, 1024 * w))
    pw = [int(x) for x in str(PW)]
    for w in range(4):
        if w == 0 or w - 1 in pw:
            e("s_waitcnt lgkmcnt(%d)" % (3 - min(x for x in pw if x >= w)))
        pkfma(vAcc, w, vP + 4 * w, vAcc if w else None)
    e("s_cbranch_scc1 L_pslow")
    e("global_store_dwordx4 v%d, %s, %s offset:-4096" % (vOa, R4(vAcc), S2(sWs)))
    stamp(9)
    e(HEND)
    e("L_pslow:")
    e("global_store_dwordx4 v%d, %s, %s offset:-4096 sc1" % (vOa, R4(vAcc), S2(sWs)))
    stamp(9)
    e(HEND)

    e("")
    c("---- consumer: clear the (max,sum) line, publish the XCC id, score the tree key")
    e("L_cons:")
    e("s_load_dword s%d, %s, 0" % (sMaskV, S2(sMk)))
    e("v_lshl_add_u32 v%d, v%d, 3, v%d" % (vT1, vT0, vMLa))
    setexec(0xff, 0xff)
    e("global_store_dwordx2 v%d, %s, %s" % (vT1, R2(vAcc), S2(sWs)))
    e("global_load_dwordx2 %s, v%d, %s sc1" % (R2(vP + 6), vT1, S2(sWs)))
    setexec(0xffffffff)
    c("row lane i: 0-3 own waves, 4-10 splits 1-7, 11 tree key, 12-15 empty")
    e("v_add_u32 v%d, -24, v%d" % (vMLa, vT1))
    e("v_bfe_u32 v%d, v0, 4, 1" % vT1)
    e("v_lshlrev_b32 v%d, 3, v%d" % (vT1, vT1))
    e("v_lshl_add_u32 v%d, v%d, 4, v%d" % (vT1, vT0, vT1))
    e("s_lshl_b32 s3, s%d, 8" % sBH)
    e("v_add_u32 v%d, s3, v%d" % (vT1, vT1))
    e("v_lshl_add_u32 v%d, v%d, 8, v%d" % (vOut, vH, vT1))
    e("v_add_u32 v%d, s3, v%d" % (vOut, vOut))
    e("global_load_dwordx2 %s, v%d, %s" % (R2(vP), vOut, S2(sQ)))
    e("global_load_dwordx2 %s, v%d, %s" % (R2(vP + 2), vT1, S2(sKt)))
    e("global_load_dwordx2 %s, v%d, %s" % (R2(vP + 4), vT1, S2(sVt)))
    e("v_add_u32 v%d, -3, v%d" % (vMx + 1, vT0))
    e("v_lshlrev_b32 v%d, v%d, 1" % (vMx + 1, vMx + 1))
    e("v_mov_b32 v%d, s%d" % (vT0, sXcc))
    e("v_mov_b32 v%d, 0xff800000" % vM)
    e("v_mov_b32 v%d, 0" % vSum)
    e("s_mov_b32 s%d, %d" % (sCnt, SPIN))
    e("s_waitcnt vmcnt(0) lgkmcnt(0)")
    setexec(1, 0)
    e("global_store_dword v%d, v%d, %s" % (vT3, vT0, S2(sDbg)))
    setexec(0xffffffff)
    for k in range(2):
        e("v_lshlrev_b32 v%d, 16, v%d" % (vP + 8 + 2 * k, vP + k))
        e("v_and_b32 v%d, 0xffff0000, v%d" % (vP + 9 + 2 * k, vP + k))
        e("v_lshlrev_b32 v%d, 16, v%d" % (vP + 12 + 2 * k, vP + 2 + k))
        e("v_and_b32 v%d, 0xffff0000, v%d" % (vP + 13 + 2 * k, vP + 2 + k))
        e("v_lshlrev_b32 v%d, 16, v%d" % (vVt + 2 * k, vP + 4 + k))
        e("v_and_b32 v%d, 0xffff0000, v%d" % (vVt + 1 + 2 * k, vP + 4 + k))
    e("v_mul_f32 v%d, v%d, v%d" % (vF, vP + 8, vP + 12))
    for k in range(1, 4):
        e("v_fmac_f32 v%d, v%d, v%d" % (vF, vP + 8 + k, vP + 12 + k))
    for st in STEPS:
        e("s_nop 1")
        e("v_add_f32_dpp v%d, v%d, v%d %s %s" % (vF, vF, vF, st, DPP))
    e("v_mov_b32 v%d, v%d" % (vT0, vF))
    e("s_nop 1")
    e("v_permlane16_swap_b32 v%d, v%d" % (vF, vT0))
    e("s_nop 0")
    e("v_add_f32 v%d, v%d, v%d" % (vF, vF, vT0))
    c("score*scale + (1 - mask) * -1e9, in log2 units")
    e("s_and_b32 s3, s%d, 16" % sBH)
    e("s_lshr_b32 s%d, s%d, s3" % (sMaskV, sMaskV))
    e("s_lshl_b32 s%d, s%d, 16" % (sMaskV, sMaskV))
    e("v_mov_b32 v%d, %s" % (vT1, f32(-1e9 * 128 ** 0.5)))
    e("v_sub_f32 v%d, 1.0, s%d" % (vT0, sMaskV))
    e("v_fmac_f32 v%d, v%d, v%d" % (vF, vT0, vT1))
    setexec(0x08000800)
    e("v_mul_f32 v%d, s%d, v%d" % (vM, sC, vF))
    e("v_mov_b32 v%d, 1.0" % vSum)
    e("s_mov_b32 s30, 0")
    setexec(0x000f000f)
    e("s_barrier")
    stamp(4)
    e("ds_read_b64 %s, v%d offset:%d" % (R2(vM), vT2, LDS_ML))
    e("s_waitcnt lgkmcnt(0)")
    setexec(0x07f007f0)
    c("collect (max,sum) of the seven producers; s30 = splits announced on the device-scope path")
    e("L_cml:")
    e("global_load_dwordx2 %s, v%d, %s sc1" % (R2(vM), vMLa, S2(sWs)))
    e("global_load_dword v%d, v%d, %s offset:128 sc1" % (vP + 2, vT3, S2(sDbg)))
    e("s_cmp_eq_u32 s30, 0")
    e("s_cbranch_scc1 L_cml_a")
    e("global_load_dwordx2 %s, v%d, %s offset:128 sc1" % (R2(vP), vMLa, S2(sWs)))
    e("v_and_b32 v%d, s30, v%d" % (vT0, vMx + 1))
    e("v_cmp_ne_u32 vcc, 0, v%d" % vT0)
    vm(0)
    e("s_sleep %d                              ; keep the poll rate on the shared flag line low" % SLP if SLP else "s_nop 0")
    e("v_cndmask_b32 v%d, v%d, v%d, vcc" % (vM, vM, vP))
    e("v_cndmask_b32 v%d, v%d, v%d, vcc" % (vSum, vSum, vP + 1))
    e("L_cml_a:")
    e("s_sub_u32 s%d, s%d, 1" % (sCnt, sCnt))
    e("s_cbranch_scc1 L_cml_done")
    vm(0)
    e("v_readfirstlane_b32 s30, v%d" % (vP + 2))
    e("v_max_u32 v%d, v%d, v%d" % (vT0, vM, vSum))
    e("v_cmp_eq_u32 vcc, -1, v%d" % vT0)
    e("s_cbranch_vccnz L_cml")
    e("L_cml_done:")
    vm(0)
    setexec(0xffffffff)
    c("normalised weight of every partial: exp2(max_i - max) / sum")
    weights(4)
    e("v_rcp_f32 v%d, v%d" % (vSum, vSum))
    e("s_nop 0")
    e("v_mul_f32 v%d, v%d, v%d" % (vF, vF, vSum))
    e("s_nop 1")
    for w in range(12):
        e("v_mov_b32_dpp v%d, v%d row_newbcast:%d %s" % (vW + w, vF, w, DPP))
    pkfma(vAcc, 11, vVt, None)
    e("s_mov_b32 s%d, %d" % (sCnt, SPIN))
    stamp(7)
    align()
    e("s_barrier")
    stamp(6)
    RB = lambda k: vP + 16 + 28 * k

    def polls(k):
        for s in range(1, 8):
            e("global_load_dwordx4 %s, v%d, %s offset:%d sc1" % (R4(RB(k) + 4 * (s - 1)), vOa, S2(sWs), s * 1024 - 4096))

    if POLL1ST:
        polls(0)
    for w in range(4):
        e("ds_read_b128 %s, v%d offset:%d" % (R4(vP + 4 * w), vO16, 1024 * w))
    if not POLL1ST:
        polls(0)
    for w in range(4):
        e("s_waitcnt lgkmcnt(%d)" % (3 - w))
        pkfma(vAcc, w, vP + 4 * w, vAcc)
    for k in range(1, PIPE):
        polls(k)
    c("poll the seven O slots; a word that is still all-ones turns the sum into a NaN")
    e("L_cpoll:")
    for k in range(PIPE):
        ws_ = [int(x) for x in str(WAITS)]
        for s in range(1, 8):
            if s == 1 or s - 1 in ws_:
                vm(7 * (PIPE - 1) + 7 - min(x for x in ws_ if x >= s))
            if CH4 and s % 2 == 0:
                pkfma(vVt, 3 + s, RB(k) + 4 * (s - 1), None if s == 2 else vVt)
                if s == 6:
                    for hh in (0, 2):
                        e("v_pk_add_f32 %s, %s, %s" % (R2(vAc2 + hh), R2(vAc2 + hh), R2(vVt + hh)))
            else:
                pkfma(vAc2, 3 + s, RB(k) + 4 * (s - 1), vAcc if s == 1 else vAc2)
        e("v_pk_add_f32 %s, %s, %s" % (R2(vT0), R2(vAc2), R2(vAc2 + 2)))
        e("v_cvt_pk_bf16_f32 v%d, v%d, v%d" % (vM, vAc2, vAc2 + 1))
        e("v_cmp_u_f32 vcc, v%d, v%d" % (vT0, vT1))
        e("v_cvt_pk_bf16_f32 v%d, v%d, v%d" % (vM + 1, vAc2 + 2, vAc2 + 3))
        if k < PIPE - 1:
            e("s_cbranch_vccz L_cout")
            polls(k)
        else:
            e("s_cbranch_vccnz L_cretry")
    e("L_cout:")
    stamp(8)
    e("global_store_dwordx2 v%d, %s, %s" % (vOut, R2(vM), S2(sOut)))
    stamp(9)
    e(HEND)
    e("L_cretry:")
    e("s_sub_u32 s%d, s%d, 1" % (sCnt, sCnt))
    e("s_cbranch_scc1 L_cout")
    e("s_and_b32 s3, s%d, 15" % sCnt)
    e("s_cbranch_scc1 L_cagain")
    c("exact test now and then: the NaN may be a genuine result")
    b = RB(PIPE - 1)
    e("v_max3_u32 v%d, v%d, v%d, v%d" % (vT0, b, b + 1, b + 2))
    for k in range(3, 27, 2):
        e("v_max3_u32 v%d, v%d, v%d, v%d" % (vT0, vT0, b + k, b + k + 1))
    e("v_max_u32 v%d, v%d, v%d" % (vT0, vT0, b + 27))
    e("v_cmp_eq_u32 vcc, -1, v%d" % vT0)
    e("s_cbranch_vccz L_cout")
    e("L_cagain:")
    polls(PIPE - 1)
    e("s_branch L_cpoll")
    nv = max(nv, RB(PIPE))

    if MINI:
        e("L_mini:")
        e("s_waitcnt vmcnt(0)")
        e("s_memrealtime s[42:43]")
        e("s_memtime s[46:47]")
        e("s_load_dword s81, s[0:1], 140")
        e("s_waitcnt lgkmcnt(0)")
        e("s_sub_u32 s46, s46, s44")
        e("s_mov_b64 exec, 1")
        e("v_mov_b32 v4, s40")
        e("v_mov_b32 v5, s42")
        e("v_mov_b32 v6, s%d" % sXcc)
        e("v_mov_b32 v7, s46")
        e("s_and_b32 s81, s81, 0x3fff")
        e("s_lshl_b32 s81, s81, 12")
        e("s_lshl_b32 s3, s2, 4")
        e("s_add_u32 s3, s3, s81")
        e("s_add_u32 s3, s3, 0x200000")
        e("v_mov_b32 v1, s3")
        e("global_store_dwordx4 v1, v[4:7], %s" % S2(sWs))
        e("s_endpgm")
    if STAMP:
        e("L_fin:")
        e("s_waitcnt vmcnt(0) lgkmcnt(0)")
        e("s_memrealtime s[60:61]")
        e("s_getreg_b32 s62, hwreg(HW_REG_XCC_ID)")
        e("s_mov_b32 s63, s%d" % sCnt)
        e("s_waitcnt lgkmcnt(0)")
        if LITE:
            e("s_cmp_eq_u32 s%d, 4" % sWave)
            e("s_cselect_b64 s[50:51], 0, s[60:61]")
        if PAD:
            e("s_sub_u32 s3, s60, s40")
            if CH == 99:
                e("s_sub_u32 s3, s62, s2")
                e("s_and_b32 s3, s3, 7")
                e("s_mul_i32 s3, s3, 125")
                e("s_add_u32 s3, s3, 250")
            e("s_min_u32 s3, s3, %d" % (12000 >> CHS))
            e("s_lshl_b32 s3, s3, %d" % CHS)
            e("s_add_u32 s39, s3, %d" % PAD)
            e("L_pad:")
            e("s_sleep 2")
            e("s_memrealtime s[60:61]")
            e("s_waitcnt lgkmcnt(0)")
            e("s_sub_u32 s3, s60, s40")
            e("s_cmp_lt_u32 s3, s39")
            e("s_cbranch_scc1 L_pad")
            e("s_endpgm")
        e("s_mul_i32 s3, s2, 5")
        e("s_add_u32 s3, s3, s%d" % sWave)
        e("s_lshl_b32 s3, s3, 7")
        e("s_add_u32 s3, s3, %d" % WS_STAMP)
        e("s_mov_b64 exec, 1")
        e("v_mov_b32 v1, s3")
        for k in range(0, 12, 2):
            for q in range(4):
                e("v_mov_b32 v%d, s%d" % (4 + q, 40 + 2 * k + q))
            e("global_store_dwordx4 v1, v[4:7], %s offset:%d" % (S2(sWs), 8 * k))
            e("s_nop 1")
    e("L_end:")
    e("s_endpgm")
    tot = max(nv, NVGPR)
    e('.section .rodata,"a"')
    e(".p2align 6")
    e(".amdhsa_kernel %s" % KNAME)
    e("  .amdhsa_next_free_vgpr %d" % tot)
    e("  .amdhsa_next_free_sgpr %d" % (96 if (MK or MINI) else 64 if STAMP else 32))
    e("  .amdhsa_accum_offset %d" % ((tot + 3) // 4 * 4))
    e("  .amdhsa_group_segment_fixed_size 0")
    e("  .amdhsa_kernarg_size 72")
    e("  .amdhsa_user_sgpr_count 2")
    e("  .amdhsa_user_sgpr_kernarg_segment_ptr 1")
    e("  .amdhsa_system_sgpr_workgroup_id_x 1")
    e("  .amdhsa_float_denorm_mode_32 3")
    e(".end_amdhsa_kernel")
    return "\n".join(("    " + l if l and not (l.startswith((";", ".", " ")) or l.endswith(":")) else l).rstrip() for l in o) + "\n"


if __name__ == "__main__":
    kw = {}
    for a in sys.argv[2:]:
        k, v = a.split("=", 1)
        kw[k] = int(v) if v.lstrip("-").isdigit() else (v == "True" if v in ("True", "False") else v)
    open(sys.argv[1], "w").write(gen(**kw))
```
